```python
import torch

def _softmax(x, axis=-1):
    return torch.softmax(x, dim=axis)

def _gelu(x):
    return torch.nn.functional.gelu(x, approximate='tanh')

def _silu(x):
    return torch.nn.functional.silu(x)

def _sigmoid(x):
    return torch.sigmoid(x)

def _layernorm(x, axis=-1, eps=1e-05):
    m = x.mean(dim=axis, keepdim=True)
    v = x.var(dim=axis, keepdim=True, unbiased=False)
    return (x - m) / torch.sqrt(v + eps)

def _scatter_add(tgt, idx, src, axis=0):
    return tgt.clone().index_add_(axis, idx, src)

def _segment_sum(src, seg, n):
    out = torch.zeros((n,) + src.shape[1:], dtype=src.dtype)
    return out.index_add_(0, seg, src)

def _pad(x, pw):
    flat = tuple((v for pair in reversed(pw) for v in pair))
    return torch.nn.functional.pad(x, flat)
kernel_name = 'sequential_preLN__compressed_kv_cla__mixer_gmlp__prompt'

def setup_inputs():

    _w = lambda a: (lambda t: t.to(torch.bfloat16) if t.is_floating_point() else t)(torch.as_tensor(a))

    def _A_setup():
        B, H, Sq, Sk, D, M = (1, 32, 2048, 2048, 128, 512)
        Dc = 4 * D
        return {'x': _w((lambda *s: torch.randn(*s, dtype=torch.bfloat16) * 0.05)(B, Sq, M)), 'c_kv': _w((lambda *s: torch.randn(*s, dtype=torch.bfloat16) * 0.4)(B, Sk, Dc)), 'w_q': _w((lambda *s: torch.randn(*s, dtype=torch.bfloat16) * 3.2)(M, H, D) * M ** (-0.5)), 'w_uk': _w((lambda *s: torch.randn(*s, dtype=torch.bfloat16) * 3.2)(Dc, H, D) * Dc ** (-0.5)), 'w_uv': _w((lambda *s: torch.randn(*s, dtype=torch.bfloat16) * 0.4)(Dc, H, D) * Dc ** (-0.5)), 'w_o': _w((lambda *s: torch.randn(*s, dtype=torch.bfloat16) * 0.4)(H, D, M) * (H * D) ** (-0.5))}
    _A_in = _A_setup()

    def _B_setup():
        B, S, D, F = (1, 2048, 512, 1792)
        Fh = F // 2
        return {'x': _w((lambda *s: torch.randn(*s, dtype=torch.bfloat16) * 0.05)(B, S, D)), 'w_in': _w((lambda *s: torch.randn(*s, dtype=torch.bfloat16) * 0.4)(D, 2 * Fh)), 'w_sp': _w(0.01 * (lambda *s: torch.randn(*s, dtype=torch.bfloat16) * 0.4)(S, S)), 'b_sp': _w(1.0 + 0.01 * (lambda *s: torch.randn(*s, dtype=torch.bfloat16) * 0.05)(S)), 'w_out': _w((lambda *s: torch.randn(*s, dtype=torch.bfloat16) * 0.05)(Fh, D))}
    _B_in = _B_setup()
    return {'A_x': _A_in['x'], 'A_c_kv': _A_in['c_kv'], 'A_w_q': _A_in['w_q'], 'A_w_uk': _A_in['w_uk'], 'A_w_uv': _A_in['w_uv'], 'A_w_o': _A_in['w_o'], 'B_x': _B_in['x'], 'B_w_in': _B_in['w_in'], 'B_w_sp': _B_in['w_sp'], 'B_b_sp': _B_in['b_sp'], 'B_w_out': _B_in['w_out']}

def reference(A_x, A_c_kv, A_w_q, A_w_uk, A_w_uv, A_w_o, B_x, B_w_in, B_w_sp, B_b_sp, B_w_out):

    def _A_ref(x, c_kv, w_q, w_uk, w_uv, w_o):
        B, Sq, M = (x.shape[0], x.shape[1], x.shape[2])
        Sk = c_kv.shape[1]
        H, D = (w_q.shape[1], w_q.shape[2])
        q = torch.einsum('bqm,mhd->bhqd', x, w_q)
        k = torch.einsum('bkc,chd->bhkd', c_kv, w_uk)
        v = torch.einsum('bkc,chd->bhkd', c_kv, w_uv)
        scores = torch.einsum('bhqd,bhkd->bhqk', q, k) * D ** (-0.5)
        off = Sk - Sq
        qi = torch.arange(Sq)[:, None]
        kj = torch.arange(Sk)[None, :]
        cmask = kj <= qi + off
        scores = torch.where(cmask[None, None], scores, -1000000000.0)
        p = _softmax(scores, axis=-1)
        ctx = torch.einsum('bhqk,bhkd->bhqd', p, v)
        return torch.einsum('bhqd,hdm->bqm', ctx, w_o)

    def _B_ref(x, w_in, w_sp, b_sp, w_out):
        B, S, D = x.shape
        F = w_in.shape[-1]
        Fh = F // 2
        z = _gelu(torch.einsum('bsd,df->bsf', x, w_in))
        z1 = z[..., :Fh].clone()
        z2 = _layernorm(z[..., Fh:], axis=-1)
        g = torch.einsum('ts,bsf->btf', w_sp, z2) + b_sp[None, :, None]
        return torch.einsum('bsf,fd->bsd', z1 * g, w_out)
    x = A_x
    h = x + _A_ref(_layernorm(x, axis=-1), A_c_kv, A_w_q, A_w_uk, A_w_uv, A_w_o)
    h2 = h + _B_ref(_layernorm(h, axis=-1), B_w_in, B_w_sp, B_b_sp, B_w_out)
    return h2
```

```python
import re

REG_RE = re.compile(r'^(-|\|)?([vas])(\d+)\|?$')
RNG_RE = re.compile(r'^(-)?([vas])\[(\d+):(\d+)\]$')
TRANS = ('v_exp_f32', 'v_log_f32', 'v_rcp_f32', 'v_rsq_f32', 'v_sqrt_f32', 'v_sin_f32', 'v_cos_f32')


def regs_of(op):
    op = op.strip()
    if op.startswith('abs(') and op.endswith(')'):
        op = op[4:-1]
    m = REG_RE.match(op)
    if m:
        return [(m.group(2), int(m.group(3)))]
    m = RNG_RE.match(op)
    if m:
        return [(m.group(2), i) for i in range(int(m.group(3)), int(m.group(4)) + 1)]
    if op == 'vcc':
        return [('x', 'vcc')]
    if op == 'exec':
        return [('x', 'exec')]
    if op == 'm0':
        return [('x', 'm0')]
    return []


class I:
    def __init__(self, text, lr=None, lw=None, tag=None):
        self.text = text.strip()
        self.lr = lr
        self.lw = lw
        self.tag = tag
        self.rd, self.wr = set(), set()
        self.srcC = set()
        self.srcAB = set()
        t = self.text
        if t.endswith(':') or t.startswith('.') or t.startswith(';') or not t:
            self.kind = 'label' if t.endswith(':') else 'meta'
            self.op = None
            return
        sp = t.split(None, 1)
        self.op = op = sp[0]
        rest = sp[1] if len(sp) > 1 else ''
        parts = [p.strip() for p in rest.split(',')] if rest else []
        self.mods = ''
        if parts:
            q = parts[-1].split(None, 1)
            if len(q) > 1 and not op.startswith('s_waitcnt'):
                parts[-1] = q[0]
                self.mods = q[1]
        R = [regs_of(p) for p in parts]
        rd, wr = self.rd, self.wr
        if op.startswith('v_mfma'):
            self.kind = 'mfma'
            wr.update(R[0]); rd.update(R[1] + R[2] + R[3])
            self.srcC = set(R[3]); self.srcAB = set(R[1] + R[2])
            self.passes = 8 if '32x32' in op else 4
        elif op.startswith('v_'):
            self.kind = 'trans' if op.replace('_e32', '').replace('_e64', '') in TRANS else 'valu'
            if op.startswith('v_permlane') and 'swap' in op:
                wr.update(R[0] + R[1]); rd.update(R[0] + R[1])
            elif op == 'v_nop':
                pass
            else:
                wr.update(R[0])
                for r in R[1:]:
                    rd.update(r)
                if op.startswith(('v_fmac', 'v_dot2c', 'v_writelane')) or 'dpp' in op or 'row_' in self.mods or 'quad_perm' in self.mods:
                    rd.update(R[0])
                if op.startswith('v_cmpx'):
                    wr.add(('x', 'exec'))
            self.dpp = ('dpp' in op) or ('row_' in self.mods) or ('quad_perm' in self.mods)
        elif op.startswith('ds_'):
            self.kind = 'ds'
            if op.startswith(('ds_read', 'ds_bpermute', 'ds_swizzle')) or '_rtn_' in op:
                wr.update(R[0])
                for r in R[1:]:
                    rd.update(r)
            else:
                for r in R:
                    rd.update(r)
        elif op.startswith(('buffer_', 'global_')):
            self.kind = 'vmem'
            mods = self.mods.split()
            self.is_dma = 'lds' in mods
            self.is_store = 'store' in op or 'atomic' in op
            if op in ('buffer_inv', 'buffer_wbl2'):
                pass
            elif self.is_dma:
                for r in R:
                    rd.update(r)
                rd.add(('x', 'm0'))
            elif 'load' in op:
                wr.update(R[0])
                for r in R[1:]:
                    rd.update(r)
            else:
                for r in R:
                    rd.update(r)
                if 'atomic' in op and 'sc0' in mods:
                    wr.update(R[0])
                self.data = set(R[0]) if op.startswith('buffer_') else set(R[1])
        elif op.startswith('s_waitcnt'):
            self.kind = 'wait'
            m = re.search(r'vmcnt\((\d+)\)', rest); self.vm = int(m.group(1)) if m else None
            m = re.search(r'lgkmcnt\((\d+)\)', rest); self.lgkm = int(m.group(1)) if m else None
        elif op == 's_barrier':
            self.kind = 'bar'
        elif op == 's_nop':
            self.kind = 'nop'
            self.n = int(rest) + 1
        elif op.startswith(('s_load', 's_memtime', 's_memrealtime')):
            self.kind = 'smem'
            wr.update(R[0])
            for r in R[1:]:
                rd.update(r)
        elif op.startswith(('s_cbranch', 's_branch', 's_endpgm', 's_setpc', 's_call', 's_swappc')):
            self.kind = 'branch'
            if 'vcc' in op:
                rd.add(('x', 'vcc'))
            if 'exec' in op:
                rd.add(('x', 'exec'))
        elif op.startswith('s_'):
            self.kind = 'salu'
            if op.startswith(('s_cmp', 's_bitcmp', 's_sleep', 's_setprio')):
                for r in R:
                    rd.update(r)
            else:
                wr.update(R[0])
                for r in R[1:]:
                    rd.update(r)
                if 'saveexec' in op:
                    wr.add(('x', 'exec')); rd.add(('x', 'exec'))
        else:
            raise ValueError('unknown instruction: ' + t)

    def slots(self):
        if self.kind == 'trans':
            return 2
        if self.kind in ('label', 'meta'):
            return 0
        if self.kind == 'nop':
            return self.n
        return 1

    def __repr__(self):
        return self.text


def vr(b, n=1, f='v'):
    return f'{f}{b}' if n == 1 else f'{f}[{b}:{b + n - 1}]'


def ar(b, n=1):
    return vr(b, n, 'a')


def sr(b, n=1):
    return vr(b, n, 's')


class Block:
    def __init__(self, name):
        self.name = name
        self.ins = []

    def __call__(self, text, **kw):
        if isinstance(text, I):
            self.ins.append(text)
            return text
        if isinstance(text, (list, tuple)):
            for t in text:
                self(t)
            return None
        i = I(text, **kw)
        self.ins.append(i)
        return i

    def text(self):
        out = []
        for i in self.ins:
            out.append(i.text if i.kind == 'label' else '  ' + i.text)
        return '\n'.join(out)


class Weave:
    def __init__(self, mfmas):
        self.m = [x if isinstance(x, I) else I(x) for x in mfmas]
        self.n = len(self.m)
        self.sc = [[] for _ in range(self.n)]
        self.mem = [[] for _ in range(self.n)]
        self.va = [[] for _ in range(self.n)]
        self.post = [[] for _ in range(self.n)]

    def used(self, g):
        u = sum(i.slots() for i in self.mem[g] + self.va[g] + self.post[g])
        u += max(0, len(self.sc[g]) - 1)
        return u

    def put(self, g, ins, post=False):
        if not isinstance(ins, I):
            ins = I(ins)
        g = min(max(g, 0), self.n - 1)
        if post:
            self.post[g].append(ins)
        elif ins.kind in ('salu', 'wait', 'bar', 'smem'):
            self.sc[g].append(ins)
        elif ins.kind in ('ds', 'vmem'):
            self.mem[g].append(ins)
        else:
            self.va[g].append(ins)
        return g

    def scalar(self, g, ins, hi=None):
        hi = self.n - 1 if hi is None else hi
        k = g
        while k <= hi and self.sc[k]:
            k += 1
        if k > hi:
            k = g
        return self.put(k, ins)

    def stream(self, items, lo, hi, spread=True, cap=2):
        items = [x if isinstance(x, I) else I(x) for x in items]
        free = [max(0, cap - self.used(g)) for g in range(lo, hi + 1)]
        need = sum(i.slots() for i in items)
        total_free = sum(free)
        g = lo
        done = 0
        pos = []
        seen_free = 0
        for it in items:
            s = it.slots()
            while True:
                if g >= hi:
                    g = hi
                    break
                fits = cap - self.used(g) >= s
                if it.kind in ('ds', 'vmem') and pos and pos[-1] == g and items[len(pos) - 1].kind not in ('ds', 'vmem'):
                    fits = False
                early = spread and total_free > need and (seen_free + free[g - lo]) * need < done * total_free
                if fits and not early:
                    break
                seen_free += free[g - lo]
                g += 1
            self.put(g, it)
            pos.append(g)
            done += s
        return pos

    def emit(self, blk):
        for g in range(self.n):
            blk(self.m[g])
            for i in self.sc[g] + self.mem[g] + self.va[g] + self.post[g]:
                blk(i)

    def cycles(self):
        c = 0
        for g in range(self.n):
            c += max(16, 8 + 4 * self.used(g))
        return c


def auto_lgkm(ins, pending=None):
    q = list(pending or [])
    out = []
    for it in ins:
        if it.kind == 'wait' and it.lgkm is not None:
            if len(q) > it.lgkm:
                q = q[len(q) - it.lgkm:] if it.lgkm else []
        touched = it.rd | it.wr
        idx = -1
        for k, w in enumerate(q):
            if w & touched:
                idx = k
        if idx >= 0:
            n = len(q) - 1 - idx
            p = len(out)
            nn = n
            k = p - 1
            ok = False
            if it.kind == 'mfma':
                while k >= 0:
                    o = out[k]
                    if o.kind == 'mfma':
                        ok = True
                        break
                    if o.kind in ('label', 'branch', 'bar'):
                        break
                    if o.kind == 'ds':
                        if nn == 0:
                            break
                        nn -= 1
                    k -= 1
            assert n <= 15 or True
            if ok:
                w = I(f's_waitcnt lgkmcnt({min(nn, 15)})')
                out.insert(k + 1, w)
            else:
                out.append(I(f's_waitcnt lgkmcnt({min(n, 15)})'))
            q = q[idx + 1:]
        if it.kind == 'ds':
            q.append(set(it.wr))
        out.append(it)
    return out, q


class CheckError(Exception):
    pass


def check_trace(trace, rings=None, private=(), verbose=False, name=''):
    rings = rings or {}
    errs = []
    seq = []
    for blk, base in trace:
        for it in blk.ins:
            if it.kind in ('label', 'meta'):
                continue
            seq.append((it, base, blk.name))
    last = {}
    for c in ('valu', 'trans', 'mfma', 'mfmaC', 'vsgpr', 'salu', 'store', 'vexec'):
        last[c] = {}
    mfma_info = {}
    pos = 0
    lg = []
    vm = []
    epoch = 0
    landed = {}
    inflight = {}
    reads_out = {}
    read_done = {}
    slot_owner = {}
    scc_op = ''

    def err(msg, it, bn):
        errs.append(f'[{name}/{bn}] {msg}: {it.text}')

    def need(cls, regs, n, it, bn, what):
        for r in regs:
            p = last[cls].get(r)
            if p is not None and pos - p - 1 < n:
                err(f'{what} needs {n} wait states, has {pos - p - 1} on {r}', it, bn)
                return

    def held(region):
        return all((slot_owner.get(s) == region) for s in slots_of(region))

    def slots_of(region):
        f = rings.get(region[0])
        if f is None:
            return [region]
        s = f(region[1])
        return s if isinstance(s, list) else [s]

    for it, base, bn in seq:
        k = it.kind
        vrd = {r for r in it.rd if r[0] in 'va'}
        vwr = {r for r in it.wr if r[0] in 'va'}
        srd = {r for r in it.rd if r[0] == 's' or r == ('x', 'vcc')}
        for w, *_ in lg:
            if w & (it.rd | it.wr):
                err('touches outstanding lgkm result', it, bn); break
        for w, *_ in vm:
            if w & (it.rd | it.wr):
                if k == 'vmem' and not (w & it.rd):
                    continue
                err('touches outstanding vmem result', it, bn); break
        if k == 'mfma':
            need('valu', vrd, 2, it, bn, 'VALU->MFMA')
            need('vexec', [('x', 'exec')], 4, it, bn, 'EXEC->MFMA')
            for r in it.srcAB:
                p = last['mfma'].get(r)
                if p is not None and pos - p - 1 < {4: 8, 8: 12}[mfma_info[p][0]]:
                    err(f'MFMA D->A/B too close on {r}', it, bn); break
            for r in it.srcC:
                p = last['mfma'].get(r)
                if p is not None and mfma_info[p][1] != it.srcC and pos - p - 1 < {4: 6, 8: 10}[mfma_info[p][0]]:
                    err(f'MFMA D->C overlap too close on {r}', it, bn); break
            for r in it.wr - it.srcC:
                p = last['mfma'].get(r)
                if p is not None and pos - p - 1 < {4: 6, 8: 10}[mfma_info[p][0]] and mfma_info[p][1] != it.wr:
                    err(f'MFMA WAW too close on {r}', it, bn); break
        if k in ('valu', 'trans', 'ds', 'vmem'):
            for r in vrd | vwr:
                p = last['mfma'].get(r)
                if p is not None and pos - p - 1 < {4: 8, 8: 12}[mfma_info[p][0]]:
                    err(f'MFMA D->{k} needs more wait states ({pos - p - 1}) on {r}', it, bn); break
        if k in ('valu', 'trans'):
            for r in vwr:
                p = last['mfmaC'].get(r)
                if p is not None and pos - p - 1 < {4: 3, 8: 7}[mfma_info[p][0]]:
                    err(f'MFMA C WAR on {r}', it, bn); break
            need('store', vwr, 2, it, bn, 'store data WAR')
            if k == 'valu':
                need('trans', vrd, 1, it, bn, 'trans->VALU')
            need('vsgpr', srd, 2, it, bn, 'VALU sgpr->VALU')
            if it.op.startswith(('v_readlane', 'v_readfirstlane')):
                need('valu', vrd, 1, it, bn, 'VALU->readlane')
                need('vexec', [('x', 'exec')], 4, it, bn, 'EXEC->readlane')
            if it.op.startswith('v_permlane'):
                need('valu', vrd, 2, it, bn, 'VALU->permlane')
            if getattr(it, 'dpp', False):
                need('valu', vrd, 2, it, bn, 'VALU->DPP')
                need('vexec', [('x', 'exec')], 5, it, bn, 'EXEC->DPP')
        if k in ('ds', 'vmem', 'mfma'):
            need('store', vwr, 1, it, bn, 'store data WAR')
        if k in ('ds', 'vmem'):
            need('trans', vrd, 1, it, bn, 'trans->mem')
        if k == 'vmem':
            need('vsgpr', srd, 5, it, bn, 'VALU sgpr->VMEM')
            if it.is_dma:
                need('salu', [('x', 'm0')], 1, it, bn, 'M0->DMA')
        if k == 'branch' and 'scc' in it.op and not scc_op.startswith(('s_cmp', 's_bitcmp')):
            err(f'branch on scc last written by {scc_op}', it, bn)
        if it.op in ('s_addc_u32', 's_subb_u32') and scc_op not in ('s_add_u32', 's_sub_u32'):
            err(f'carry from {scc_op}', it, bn)
        if it.op.startswith('s_cselect') and not scc_op.startswith(('s_cmp', 's_bitcmp')):
            err(f'select on scc last written by {scc_op}', it, bn)
        if k == 'salu' and not it.op.startswith(('s_mov', 's_mul_', 's_cselect', 's_sleep', 's_setprio', 's_getpc')):
            scc_op = it.op
        if it.lr is not None:
            reg = (it.lr[0], it.lr[1] + base)
            if inflight.get(reg, 0) > 0:
                err(f'reads LDS region {reg} with writes in flight', it, bn)
            elif reg not in landed:
                err(f'reads LDS region {reg} never written', it, bn)
            elif reg[0] not in private and landed[reg] >= epoch:
                err(f'reads LDS region {reg} without a barrier after its writes landed', it, bn)
            elif not held(reg):
                err(f'reads LDS region {reg} whose slot was overwritten', it, bn)
            reads_out[reg] = reads_out.get(reg, 0) + 1
        if it.lw is not None:
            reg = (it.lw[0], it.lw[1] + base)
            for s in slots_of(reg):
                old = slot_owner.get(s)
                if old is not None and old != reg:
                    both_private = old[0] in private and reg[0] == old[0]
                    if reads_out.get(old, 0) > 0:
                        err(f'overwrites {old} with reads outstanding', it, bn)
                    elif not both_private and read_done.get(old, -1) >= epoch:
                        err(f'overwrites {old} without a barrier after its last read', it, bn)
                    elif inflight.get(old, 0) > 0 or (not both_private and landed.get(old, -1) >= epoch):
                        err(f'overwrites {old} whose writes may be in flight', it, bn)
                slot_owner[s] = reg
            inflight[reg] = inflight.get(reg, 0) + 1
        if k == 'wait':
            if it.lgkm is not None:
                if any(x[3] for x in lg) and it.lgkm != 0:
                    err('counted lgkm wait with SMEM outstanding', it, bn)
                while len(lg) > it.lgkm:
                    w, r, wl, _ = lg.pop(0)
                    if r is not None:
                        reads_out[r] -= 1; read_done[r] = epoch
                    if wl is not None:
                        inflight[wl] -= 1; landed[wl] = epoch
            if it.vm is not None:
                while len(vm) > it.vm:
                    w, wl = vm.pop(0)
                    if wl is not None:
                        inflight[wl] -= 1; landed[wl] = epoch
        elif k == 'bar':
            epoch += 1
        elif k == 'ds':
            lg.append((set(it.wr), None if it.lr is None else (it.lr[0], it.lr[1] + base),
                       None if it.lw is None else (it.lw[0], it.lw[1] + base), False))
        elif k == 'smem':
            lg.append((set(it.wr), None, None, True))
        elif k == 'vmem':
            vm.append((set(it.wr), None if it.lw is None else (it.lw[0], it.lw[1] + base)))
            if len(vm) > 63:
                err('more than 63 vmem ops outstanding', it, bn)
            if it.is_store and hasattr(it, 'data') and len(it.data) > 2:
                for r in it.data:
                    last['store'][r] = pos
        if k == 'mfma':
            mfma_info[pos] = (it.passes, set(it.wr))
            for r in it.wr:
                last['mfma'][r] = pos
            for r in it.srcC:
                last['mfmaC'][r] = pos
        elif k in ('valu', 'trans'):
            for r in it.wr:
                if r[0] in 'va':
                    last['valu'][r] = pos
                    if k == 'trans':
                        last['trans'][r] = pos
                    else:
                        last['trans'].pop(r, None)
                    last['mfma'].pop(r, None)
                elif r == ('x', 'exec'):
                    last['vexec'][r] = pos
                else:
                    last['vsgpr'][r] = pos
        elif k == 'salu':
            for r in it.wr:
                last['salu'][r] = pos
                last['vsgpr'].pop(r, None)
        pos += it.n if k == 'nop' else 1
    return errs


class VmQ:
    def __init__(self):
        self.q = []

    def scan(self, ins):
        for it in ins:
            self.step(it)

    def step(self, it):
        if it.kind == 'vmem':
            self.q.append(it.tag)
        elif it.kind == 'wait' and it.vm is not None:
            if len(self.q) > it.vm:
                self.q = self.q[len(self.q) - it.vm:] if it.vm else []

    def count_after(self, pred):
        idx = -1
        for k, t in enumerate(self.q):
            if t is not None and pred(t):
                idx = k
        if idx < 0:
            return None
        return len(self.q) - 1 - idx


def resolve_vm(ins, q=None):
    q = q or VmQ()
    out = []
    for it in ins:
        if it.kind == 'wait' and isinstance(it.tag, tuple) and it.tag and it.tag[0] == 'vmwait':
            n = q.count_after(it.tag[1])
            if n is None:
                continue
            it = I(f's_waitcnt vmcnt({min(n, 63)})')
        q.step(it)
        out.append(it)
    return out, q


def vmwait(pred):
    return I('s_waitcnt vmcnt(63)', tag=('vmwait', pred))


def auto_vm(ins, q=None):
    q = list(q or [])
    out = []
    for it in ins:
        if it.kind == 'wait' and it.vm is not None:
            if len(q) > it.vm:
                q = q[len(q) - it.vm:] if it.vm else []
        touched = it.rd | (it.wr if it.kind != 'vmem' else set())
        idx = -1
        for k, w in enumerate(q):
            if w & touched:
                idx = k
        if idx >= 0:
            n = len(q) - 1 - idx
            p = len(out)
            nn = n
            k = p - 1
            ok = False
            if it.kind == 'mfma':
                while k >= 0:
                    o = out[k]
                    if o.kind == 'mfma':
                        ok = True
                        break
                    if o.kind in ('label', 'branch', 'bar'):
                        break
                    if o.kind == 'vmem':
                        if nn == 0:
                            break
                        nn -= 1
                    k -= 1
            if ok:
                out.insert(k + 1, I(f's_waitcnt vmcnt({min(nn, 63)})'))
            else:
                out.append(I(f's_waitcnt vmcnt({min(n, 63)})'))
            q = q[idx + 1:]
        if it.kind == 'vmem':
            q.append(set(it.wr))
        out.append(it)
    return out, q
```

```python
import sys, struct, math
from asmdsl import *

NAME = 'sequential_preLN__compressed_kv_cla__mixer_gmlp__prompt'

XN = 0x0000000
KV = 0x0200000
CTX = 0x2200000
WO = 0x3200000
WSP = 0x3600000
WIN = 0x3E00000
WOUT = 0x4000000
HH = 0x4100000
Z1 = 0x4300000
Z2 = 0x4700000
UU = 0x4B00000
HST = 0x4F00000
ZST = 0x4F40000
FLG = 0x4F80000
PROF = 0x4FC0000
WS_BYTES = 0x10000000
F_XN, F_KV, F_WT, F_CTX, F_H, F_ZS, F_Z2, F_U, F_END = 0, 16, 48, 56, 88, 120, 184, 200, 328
OOB = 0x20000000
SPIN_MAX = 1 << 17


def f2u(x):
    return struct.unpack('<I', struct.pack('<f', x))[0]


def fl(x):
    return hex(f2u(x))


QSCALE = 128 ** -0.5 * math.log2(math.e)
BIG = 1e30

sWS = 4
sA, sB, sC = 8, 12, 16
sW, sH, sJ = 20, 21, 22
sT0, sT1, sT2, sT3 = 23, 24, 25, 26
sSpin = 27
sRet = 28
sCnt, sCnt2 = 30, 31
P_X, P_C, P_WQ, P_WUK, P_WUV, P_WO, P_BX, P_WIN, P_WSP, P_BSP, P_WOUT, P_OUT, P_DBG, P_WS = [64 + 2 * k for k in range(14)]
sG, sHook, sTry = 92, 93, 94
sStamp = 96

vL16 = 255
vSig = 254
vOne = 253


OPT = {}


class Gen:
    def __init__(self, prof=False, stop=None):
        self.prof = prof
        self.stop = stop
        self.blocks = []
        self.cold = Block('cold')
        self.B = {}
        self.nl = 0
        self.nstamp = 0

    def blk(self, name):
        b = Block(name)
        self.blocks.append(b)
        self.B[name] = b
        return b

    def label(self, p):
        self.nl += 1
        return f'L{p}{self.nl}'

    def srd(self, b, dst, ptr, nbytes, off=None):
        if off is None:
            b(f's_mov_b32 s{dst}, s{ptr}')
            b(f's_mov_b32 s{dst + 1}, s{ptr + 1}')
        else:
            b(f's_add_u32 s{dst}, s{ptr}, {off}')
            b(f's_addc_u32 s{dst + 1}, s{ptr + 1}, 0')
        b(f's_mov_b32 s{dst + 2}, {nbytes}')
        b(f's_mov_b32 s{dst + 3}, 0x20000')

    def stamp(self, tmp):
        if not self.prof:
            return []
        n = self.nstamp
        self.nstamp += 1
        return [f's_memrealtime s[{sStamp}:{sStamp + 1}]', f's_memtime s[{P_BX}:{P_BX + 1}]', 's_waitcnt lgkmcnt(0)',
                f'v_mov_b32 v{tmp}, s{sStamp}', f'v_mov_b32 v{tmp + 1}, s{P_BX}',
                f's_lshl_b32 s{sStamp}, s2, 8', f's_add_u32 s{sStamp}, s{sStamp}, {PROF + 8 * n}',
                I(f'buffer_store_dwordx2 v[{tmp}:{tmp + 1}], v{vSig}, s[{sWS}:{sWS + 3}], s{sStamp} offen', tag='untracked'),
                's_nop 1']

    def poll_load(self, vdst, vaddr, srd=sWS, soff='0', tag=None):
        return I(f'buffer_load_dword v{vdst}, v{vaddr}, s[{srd}:{srd + 3}], {soff} offen sc1', tag=tag)

    def poll_check(self, vdst, vaddr, target, srd=sWS, soff='0'):
        ls, lb = self.label('spin'), self.label('back')
        c = self.cold
        c(f'{ls}:')
        c(f's_mov_b32 s{sSpin}, 0')
        c(f'{ls}a:')
        c('s_sleep 1')
        c(f'buffer_load_dword v{vdst}, v{vaddr}, s[{srd}:{srd + 3}], {soff} offen sc1')
        c(f's_add_u32 s{sSpin}, s{sSpin}, 1')
        c(f's_cmp_gt_u32 s{sSpin}, {SPIN_MAX}')
        c(f's_cbranch_scc1 {ls}b')
        c('s_waitcnt vmcnt(0)')
        c(f'v_cmp_gt_u32 vcc, {target}, v{vdst}')
        c('s_nop 1')
        c(f's_cbranch_vccnz {ls}a')
        c(f'{ls}b:')
        c('s_waitcnt vmcnt(0)')
        c(f's_branch {lb}')
        return [I(f'v_cmp_gt_u32 vcc, {target}, v{vdst}'), I('s_nop 1'), I(f's_cbranch_vccnz {ls}'), I(f'{lb}:')]

    def signal(self, soff):
        return I(f'buffer_atomic_add v{vOne}, v{vSig}, s[{sWS}:{sWS + 3}], {soff} offen sc1', tag='sig')

    def prologue(self):
        b = self.blk('pro')
        b('s_cmp_ge_u32 s2, 256')
        b('s_cbranch_scc1 Lend')
        b('s_load_dwordx16 s[64:79], s[0:1], 0')
        b('s_load_dwordx8 s[80:87], s[0:1], 64')
        b('s_load_dwordx4 s[88:91], s[0:1], 96')
        b('v_lshrrev_b32 v1, 6, v0')
        b('v_and_b32 v2, 63, v0')
        b(f'v_readfirstlane_b32 s{sW}, v1')
        b(f'v_lshlrev_b32 v{vL16}, 4, v2')
        b('v_cmp_eq_u32 vcc, 0, v0')
        b(f'v_mov_b32 v3, {OOB}')
        b(f'v_mov_b32 v{vOne}, 1')
        b(f'v_cndmask_b32 v{vSig}, v3, v0, vcc')
        b(f's_and_b32 s{sT0}, s2, 7')
        b(f's_lshl_b32 s{sT0}, s{sT0}, 2')
        b(f's_bfe_u32 s{sT1}, s2, 0x20003')
        b(f's_add_u32 s{sH}, s{sT0}, s{sT1}')
        b(f's_lshr_b32 s{sJ}, s2, 5')
        b(f's_mov_b32 s{sTry}, 0')
        return b

    def phaseAQ(self):
        b = self.B['pro']
        vT, vCr, vCr2, vCd, vWb, vWd, vP, vPa = 224, 228, 230, 232, 233, 234, 235, 236
        vF = 192
        sR, sWq, sKV, sW1, sW2, sMx, sMw, sXst, sNeg = 32, 40, 44, 52, 53, 54, 55, 56, 57
        LX = 65536
        xphys = {2: 0, 0: 32768, 1: 65536}
        b('v_and_b32 v4, 15, v2')
        b('v_lshrrev_b32 v5, 4, v2')
        b('v_lshrrev_b32 v6, 2, v2')
        b('v_lshlrev_b32 v7, 7, v6')
        b('v_bfe_u32 v8, v6, 1, 2')
        b('v_lshl_add_u32 v7, v8, 5, v7')
        b('v_and_b32 v8, 3, v2')
        b(f'v_lshl_add_u32 v{vT}, v8, 3, v7')
        for nb in range(1, 4):
            b(f'v_xor_b32 v{vT + nb}, {nb * 32}, v{vT}')
        b('v_and_b32 v6, 6, v4')
        b('v_xor_b32 v6, v6, v5')
        b('v_lshlrev_b32 v6, 4, v6')
        b('v_lshl_add_u32 v6, v4, 7, v6')
        b(f's_lshl_b32 s{sMx}, s{sW}, 13')
        b(f's_add_u32 s{sMx}, s{sMx}, {LX}')
        b(f'v_add_u32 v{vCr}, s{sMx}, v6')
        b(f'v_xor_b32 v{vCr + 1}, 64, v{vCr}')
        b(f'v_add_u32 v{vCr2}, 0x10000, v{vCr}')
        b(f'v_add_u32 v{vCr2 + 1}, 0x10000, v{vCr + 1}')
        b('v_lshrrev_b32 v6, 3, v2')
        b('v_and_b32 v7, 7, v2')
        b('v_and_b32 v8, 6, v6')
        b('v_xor_b32 v8, v8, v7')
        b('v_lshlrev_b32 v8, 4, v8')
        b(f'v_lshl_add_u32 v{vCd}, v6, 10, v8')
        b('v_and_b32 v7, 4, v6')
        b('v_add_u32 v7, v7, v6')
        b('v_lshl_add_u32 v7, v7, 13, v8')
        b(f's_lshl_b32 s{sT0}, s{sH}, 8')
        b(f'v_add_u32 v{vWb}, s{sT0}, v7')
        b(f's_mov_b32 s{sWq}, 0')
        b(f's_mov_b32 s{sWq + 1}, {16 * 8192 - 1024}')
        b(f's_mov_b32 s{sWq + 2}, {4 * 8192 - 2048}')
        b(f's_mov_b32 s{sWq + 3}, {20 * 8192 - 3072}')
        b(f's_lshr_b32 s{sT0}, s{sW}, 1')
        b(f's_lshl_b32 s{sT0}, s{sT0}, 18')
        b(f's_and_b32 s{sT1}, s{sW}, 1')
        b(f's_lshl_b32 s{sT1}, s{sT1}, 7')
        b(f's_add_u32 s{sW1}, s{sT0}, s{sT1}')
        b(f's_lshl_b32 s{sW2}, s{sW}, 18')
        b(f's_lshl_b32 s{sMw}, s{sW}, 12')
        b(f's_lshl_b32 s{sT0}, s{sJ}, 18')
        b(f's_lshl_b32 s{sT1}, s{sW}, 16')
        b(f's_add_u32 s{sT0}, s{sT0}, s{sT1}')
        for n in range(8):
            b(f's_add_u32 s{sR + n}, s{sT0}, {n * 8192 - (n & 3) * 1024}')
        b(f's_lshl_b32 s{sT0}, s{sH}, 20')
        b(f's_lshl_b32 s{sT1}, s{sJ}, 17')
        b(f's_add_u32 s{sT0}, s{sT0}, s{sT1}')
        b(f's_lshl_b32 s{sT1}, s{sW}, 15')
        b(f's_add_u32 s{sT0}, s{sT0}, s{sT1}')
        for n in range(8):
            b(f's_add_u32 s{sKV + n}, s{sT0}, {KV + n * 4096}')
        b(f's_lshl_b32 s{sXst}, s2, 13')
        b(f's_lshl_b32 s{sT1}, s{sW}, 11')
        b(f's_add_u32 s{sXst}, s{sXst}, s{sT1}')
        b(f's_mov_b32 s{sNeg}, {fl(-1.0 / 512)}')
        b(f'v_mov_b32 v{vPa}, 0')
        b('s_waitcnt lgkmcnt(0)')
        self.srd(b, sWS, P_WS, WS_BYTES)
        self.srd(b, sA, P_WUK, 4 << 20)
        self.srd(b, sB, P_C, 2 << 20)
        self.srd(b, sC, P_X, 2 << 20)
        b(self.stamp(10))
        b(f's_or_b32 s{sT0}, s2, s{sW}')
        b(f's_cmp_eq_u32 s{sT0}, 0')
        b('s_cbranch_scc1 Lzero')
        b('Lzero_back:')
        c = self.cold
        c('Lzero:')
        c('v_lshlrev_b32 v10, 7, v2')
        c('v_mov_b32 v11, 0')
        for n in range((F_END + 63) // 64):
            c(f's_mov_b32 s{sT0}, {FLG + n * 8192}')
            c(f'buffer_store_dword v11, v10, s[{sWS}:{sWS + 3}], s{sT0} offen sc1')
        c('s_branch Lzero_back')

        def dma_rows(q, srd, first=False):
            out = []
            reg = q if srd == sB else q + 9
            for n in range(8):
                if n % 4 == 0:
                    out.append(I(f's_add_u32 m0, s{sMx}, {xphys[q % 3] + (n >> 2) * 4096}'))
                sc = ' sc1' if srd == sWS else ''
                off = f' offset:{(n & 3) * 1024}' if n & 3 else ''
                out.append(I(f'buffer_load_dwordx4 v{vCd}, s[{srd}:{srd + 3}], s{sR + n} offen{off}{sc} lds', lw=('X', reg), tag=('x', reg)))
            out.append(I(f'v_add_u32 v{vCd}, {128 if q < 7 else hex((-7 * 128) & 0xffffffff)}, v{vCd}'))
            return out

        def dma_w(G):
            if G < 8:
                base, o = sW1, G * 64 * 8192
            elif G < 16:
                base, o = sW2, ((G - 8) & 3) * 128 * 8192 + ((G - 8) >> 2) * 128
            else:
                base, o = sW1, (G - 16) * 64 * 8192
            pre = []
            if G in (8, 16):
                p = P_WUV if G == 8 else P_WQ
                pre = [I(f's_mov_b32 s{sA}, s{p}'), I(f's_mov_b32 s{sA + 1}, s{p + 1}')]
            pre += [I(f's_add_u32 s{sT2}, s{base}, {o}'), I(f's_add_u32 m0, s{sMw}, {(G % 4) * 16384}')]
            v = I(f'v_add_u32 v{vWd}, s{sT2}, v{vWb}')
            d = [I(f'buffer_load_dwordx4 v{vWd}, s[{sA}:{sA + 3}], s{sWq + n} offen{f" offset:{n * 1024}" if n else ""} lds',
                   lw=('W', G), tag=('w', G)) for n in range(4)]
            return pre, v, d

        def seq(lst):
            for k, it in enumerate(lst):
                b(it)
                if it.kind == 'salu' and ('x', 'm0') in it.wr:
                    b('s_nop 0')

        xr = 128
        b(f'buffer_load_dwordx4 v[{xr}:{xr + 3}], v{vL16}, s[{sC}:{sC + 3}], s{sXst} offen', tag='xrow')
        b(f'buffer_load_dwordx4 v[{xr + 4}:{xr + 7}], v{vL16}, s[{sC}:{sC + 3}], s{sXst} offen offset:1024', tag='xrow')
        for G in range(3):
            pre, v, d = dma_w(G)
            seq(pre + [v] + d)
            seq(dma_rows(G, sB))
        self.srd(b, sC, P_DBG, 256)

        def accK(db, kb): return (db * 4 + kb) * 4
        def accQ(db, kb): return 64 + (db * 4 + kb) * 4
        def accV(Gv, nb, kb): return (128 if Gv == 0 else 0) + (nb * 4 + kb) * 4
        def cf(kb, ks): return (ks * 4 + kb) * 4
        mf = []
        frs = []
        for G in range(24):
            slot = (G % 4) * 16384
            if G < 8 or G >= 16:
                q = G % 8
                acc = accK if G < 8 else accQ
                for db in range(8):
                    f0 = len(frs)
                    for ks in range(2):
                        r = vF + 4 * ((f0 + ks) % 8)
                        img = slot + (ks * 2 + (db >> 2)) * 4096
                        rd = [I(f'ds_read_b64_tr_b16 v[{r + 2 * t}:{r + 2 * t + 1}], v{vT + (db & 3)} offset:{img + 2048 * t}', lr=('W', G)) for t in range(2)]
                        frs.append([len(mf) + ks, len(mf) + 6 + ks, rd])
                    for kb in range(4):
                        for ks in range(2):
                            d = acc(db, kb)
                            r = vF + 4 * ((f0 + ks) % 8)
                            cc = '0' if (q == 0 and ks == 0) else vr(d, 4)
                            mf.append(f'v_mfma_f32_16x16x32_bf16 {vr(d, 4)}, {vr(r, 4)}, {ar(cf(kb, 2 * q + ks), 4)}, {cc}')
            else:
                Gv, kq = (G - 8) >> 2, (G - 8) & 3
                for nb in range(4):
                    f0 = len(frs)
                    for ks in range(4):
                        r = vF + 4 * ((f0 + ks) % 8)
                        img = slot + ks * 4096
                        rd = [I(f'ds_read_b64_tr_b16 v[{r + 2 * t}:{r + 2 * t + 1}], v{vT + nb} offset:{img + 2048 * t}', lr=('W', G)) for t in range(2)]
                        frs.append([len(mf) + ks, len(mf) + 12 + ks, rd])
                    for kb in range(4):
                        for ks in range(4):
                            d = accV(Gv, nb, kb)
                            r = vF + 4 * ((f0 + ks) % 8)
                            cc = '0' if (kq == 0 and ks == 0) else vr(d, 4)
                            mf.append(f'v_mfma_f32_16x16x32_bf16 {vr(d, 4)}, {ar(cf(kb, 4 * kq + ks), 4)}, {vr(r, 4)}, {cc}')
        W = Weave(mf)
        BAR = 46

        def rows_read(q, reg):
            out = []
            for kb in range(4):
                for ks in range(2):
                    ph = xphys[q % 3]
                    va = (vCr2 if ph >= 65536 else vCr) + ks
                    out.append(I(f'ds_read_b128 {ar(cf(kb, 2 * q + ks), 4)}, v{va} offset:{(ph & 65535) + kb * 2048}', lr=('X', reg)))
            return out

        b(vmwait(lambda t: t in (('w', 0), ('x', 0))))
        b('s_barrier')
        for it in rows_read(0, 0):
            b(it)
        for n in range(4):
            b(frs[n][2])
        b(f's_or_b32 s{sT0}, s2, s{sW}')
        b(f's_cmp_eq_u32 s{sT0}, 0')
        b('s_cbranch_scc1 Linit')
        b('Linit_back:')
        c('Linit:')
        c(f'buffer_store_dword v{vOne}, v{vSig}, s[{sC}:{sC + 3}], 0 offen sc1')
        c('s_branch Linit_back')

        waits = {G: [] for G in range(24)}
        for G in range(23):
            waits[G].append(('w', G + 1))
        for G in range(24):
            g0 = 64 * G
            nq = None
            if G < 7:
                nq, reg = G + 1, G + 1
            elif 15 <= G < 23:
                nq, reg = G - 15, G - 15 + 9
            if nq is not None:
                waits[G].append(('x', reg))
                for k, it in enumerate(rows_read(nq, reg)):
                    W.put(g0 + BAR + 1 + k, it)
        g = 0
        for n in range(4, len(frs)):
            fu, lu, rd = frs[n]
            lo = max(fu - 17, frs[n - 8][1] if n >= 8 else 0, g)
            G = fu // 64
            lo = max(lo, 64 * (G - 1) + BAR + 1)
            for it in rd:
                while W.used(lo) >= 2 or (len(W.mem[lo]) >= 1 and fu - lo > 12 and W.mem[lo][-1].lr[0] == 'W'):
                    lo += 1
                W.put(lo, it)
            g = lo
        for G in range(21):
            g0 = 64 * G
            pre, v, d = dma_w(G + 3)
            k = g0 + BAR + 2
            for it in pre:
                k = W.scalar(k, it) + 1
            k = max(k, g0 + BAR + 9)
            k = W.stream([v], k, g0 + 63, spread=False)[0] + 1
            W.stream(d, k, g0 + 63, spread=False)

        def put_rows(G, q, srd, lo=2, hi=40):
            g0 = 64 * G
            lst = dma_rows(q, srd)
            k = g0 + lo
            step = (hi - lo) // 9
            for it in lst:
                if it.kind == 'salu':
                    k = W.scalar(k, it) + 1
                else:
                    k = W.stream([it], k, g0 + 63, spread=False)[0] + (step if it.kind == 'vmem' else 1)
        for G in range(5):
            put_rows(G, G + 3, sB, lo=9)
        ln = [[], []]
        for r in range(2):
            src, e, s, t = xr + 4 * r, 136 + 8 * r, 152 + 2 * r, 153 + 2 * r
            L = ln[r]
            for k in range(4):
                L.append(f'v_lshlrev_b32 v{e + 2 * k}, 16, v{src + k}')
                L.append(f'v_and_b32 v{e + 2 * k + 1}, 0xffff0000, v{src + k}')

            def red(L, s, t):
                for sh in (8, 4, 2, 1):
                    L.append(f'v_add_f32_dpp v{s}, v{s}, v{s} row_ror:{sh} row_mask:0xf bank_mask:0xf')
                for w in (16, 32):
                    L.append(f'v_mov_b32 v{t}, v{s}')
                    L.append(f'v_permlane{w}_swap_b32 v{s}, v{t}')
                    L.append(f'v_add_f32 v{s}, v{s}, v{t}')
            L.append(f'v_add_f32 v{s}, v{e}, v{e + 1}')
            for k in range(2, 8):
                L.append(f'v_add_f32 v{s}, v{s}, v{e + k}')
            red(L, s, t)
            for k in range(8):
                L.append(f'v_fmac_f32 v{e + k}, s{sNeg}, v{s}')
            L.append(f'v_mul_f32 v{s}, v{e}, v{e}')
            for k in range(1, 8):
                L.append(f'v_fmac_f32 v{s}, v{e + k}, v{e + k}')
            red(L, s, t)
            L.append(f'v_mul_f32 v{s}, {fl(1.0 / 512)}, v{s}')
            L.append(f'v_add_f32 v{s}, {fl(1e-5)}, v{s}')
            L.append(f'v_rsq_f32 v{s}, v{s}')
            L.append(f'v_mul_f32 v{s}, {fl(QSCALE)}, v{s}')
            for k in range(8):
                L.append(f'v_mul_f32 v{e + k}, v{e + k}, v{s}')
            for k in range(4):
                L.append(f'v_cvt_pk_bf16_f32 v{src + k}, v{e + 2 * k}, v{e + 2 * k + 1}')
            L.append(I(f'buffer_store_dwordx4 v[{src}:{src + 3}], v{vL16}, s[{sWS}:{sWS + 3}], s{sXst} offen{" offset:1024" if r else ""} sc1', tag='xnst'))
        lnl = [x for p in zip(*ln) for x in p]
        pos = W.stream(lnl, 1, 64 * 4 - 1, spread=False)
        Gln = pos[-1] // 64
        Gs = Gln + 2
        W.stream([self.poll_load(vP, vPa, srd=sC, tag='pinit')], 64 * (Gs - 1) + 4, 64 * Gs, spread=False)
        waits[Gs] += ['xnst', 'pinit']
        post = {G: [] for G in range(24)}
        post[Gs] += self.poll_check(vP, vPa, 1, srd=sC)
        k = W.scalar(64 * Gs + 8, f's_lshr_b32 s{sT3}, s2, 4')
        k = W.scalar(k + 1, f's_lshl_b32 s{sT3}, s{sT3}, 7')
        k = W.scalar(k + 1, f's_add_u32 s{sT3}, s{sT3}, {FLG + F_XN * 128}')
        post[Gs].append(self.signal(f's{sT3}'))
        Gx = 11
        k = W.scalar(64 * 9 + 2, f's_lshl_b32 s{sT0}, s{sJ}, 7')
        k = W.scalar(k + 1, f's_sub_u32 s{sT1}, {FLG + (F_XN + 15) * 128}, s{sT0}')
        k = W.scalar(k + 1, f's_add_u32 s{sT0}, s{sT0}, {FLG + F_XN * 128}')
        W.stream([f'v_mov_b32 v{vPa}, s{sT0}', f'v_writelane_b32 v{vPa}, s{sT1}, 1'], k + 1, k + 20, spread=False)
        W.stream([self.poll_load(vP, vPa, tag='pxn')], 64 * (Gx - 1) + 30, 64 * Gx, spread=False)
        waits[Gx].append('pxn')
        post[Gx] += self.poll_check(vP, vPa, 16)
        k = W.scalar(64 * 10 + 2, f's_lshl_b32 s{sT0}, s{sJ}, 17')
        k = W.scalar(k + 1, f's_lshl_b32 s{sT1}, s{sW}, 14')
        k = W.scalar(k + 1, f's_sub_u32 s{sT3}, s{sT1}, s{sT0}')
        k = W.scalar(k + 1, f's_add_u32 s{sT0}, s{sT1}, s{sT0}')
        for n in range(8):
            kb, half = n >> 1, n & 1
            if kb < 2:
                k = W.scalar(k + 1, f's_add_u32 s{sR + n}, s{sT0}, {XN + kb * 65536 + half * 8192 - (n & 3) * 1024}')
            else:
                k = W.scalar(k + 1, f's_add_u32 s{sR + n}, s{sT3}, {XN + (28 + kb) * 65536 + half * 8192 - (n & 3) * 1024}')
        for q in range(3):
            put_rows(12 + q, q, sWS)
        for q in range(3, 8):
            put_rows(16 + q - 3, q, sWS, lo=9)

        def pack(a, c2, n):
            return [f'v_cvt_pk_bf16_f32 v{a}, v{a}, v{a + 1}', f'v_cvt_pk_bf16_f32 v{a + 1}, v{a + 2}, v{a + 3}',
                    f'v_cvt_pk_bf16_f32 v{a + 2}, v{c2}, v{c2 + 1}', f'v_cvt_pk_bf16_f32 v{a + 3}, v{c2 + 2}, v{c2 + 3}',
                    I(f'buffer_store_dwordx4 v[{a}:{a + 3}], v{vL16}, s[{sWS}:{sWS + 3}], s{sKV + (n >> 2)} offen{f" offset:{(n & 3) * 1024}" if n & 3 else ""} {OPT.get("kvfl", "sc1")}', tag='kvst')]
        kst = [pack(accK(2 * t, kb), accK(2 * t + 1, kb), kb * 4 + t) for t in range(4) for kb in range(4)]
        vst = [[pack(accV(Gv, nb, 2 * kc), accV(Gv, nb, 2 * kc + 1), 16 + (4 * Gv + nb) * 2 + kc) for nb in range(4) for kc in range(2)] for Gv in range(2)]
        flat = lambda L: [x for p in L for x in p]
        W.stream(flat(kst[:12]), 64 * 8 + 6, 64 * 12 - 4)
        W.stream(flat(kst[12:] + vst[0]), 64 * 12 + 2, 64 * 16 - 4)
        W.stream(flat(vst[1]), 64 * 16 + 6, 64 * 18 + 20)
        Gk = 19
        waits[Gk].append('kvst')
        k = W.scalar(64 * Gk + 8, f's_lshl_b32 s{sT3}, s{sH}, 7')
        k = W.scalar(k + 1, f's_add_u32 s{sT3}, s{sT3}, {FLG + F_KV * 128}')
        post[Gk].append(self.signal(f's{sT3}'))
        W.stream([f'v_mov_b32 v{vPa}, s{sT3}'], k + 2, k + 20, spread=False)
        Gp = 21
        W.stream([self.poll_load(vP, vPa, tag='pkv')], 64 * Gp + 10, 64 * Gp + 30, spread=False)
        waits[Gp].append('pkv')
        post[Gp] += self.poll_check(vP, vPa, 8)
        A = self.att_setup(W, waits, post, BAR)
        qe = []
        for t in range(4):
            L = []
            for s in range(4):
                a, c2 = accQ(2 * t, s), accQ(2 * t + 1, s)
                L += pack(a, c2, 0)[:4]
                L += [f'v_accvgpr_write_b32 a{128 + (s * 4 + t) * 4 + k}, v{a + k}' for k in range(4)]
            qe.append(L)
        g = 0
        tail = []
        for t in range(3):
            lo = max(64 * 23 + 16 * (t + 1) + 4, g)
            for it in qe[t]:
                while lo < 64 * 24 and W.used(lo) >= 2:
                    lo += 1
                if lo < 64 * 24:
                    W.put(lo, it)
                else:
                    tail.append(it)
            g = lo
        for G in range(24):
            tags = waits[G]
            W.put(64 * G + BAR - 1, vmwait(lambda t, tags=tags: t in tags))
            W.put(64 * G + BAR, 's_barrier')
            for it in post[G]:
                W.put(64 * G + BAR, it, post=True)
        if self.prof:
            for G in OPT.get('stamps', (8, 16)):
                for it in self.stamp(238):
                    W.put(64 * G, it, post=True)
        W.emit(b)
        if len(tail) < 8:
            b(f's_nop {7 - len(tail)}')
        b(tail + qe[3])
        b(self.stamp(238))
        print('phase AQ estimated cycles', W.cycles(), 'tail', len(tail), file=sys.stderr)

    def S(self, buf, kb, s): return buf * 64 + (kb * 4 + s) * 4
    def P(self, buf, s, kc): return 128 + buf * 32 + (s * 2 + kc) * 4
    CT = 192
    def NM(self, s): return 208 + 4 * s
    def LL(self, s): return 224 + 4 * s
    vA, vB, vOnes, vTmp = 240, 241, 244, 248
    def O(self, db, s): return (db * 4 + s) * 4
    def Q(self, s, t): return 128 + (s * 4 + t) * 4
    def FR(self, n): return 192 + 4 * (n % 16)
    sMask = 32
    sCtx = 98
    LOOK = 8

    def kv_dma(self, reg, n0=0, cnt=4):
        return [I(f'buffer_load_dwordx4 v{vL16}, s[{sB}:{sB + 3}], s{sG} offen{f" offset:{n * 1024}" if n else ""} sc1 lds', lw=reg, tag=reg) for n in range(cnt)]

    def att_setup(self, W, waits, post, BAR):
        k = W.scalar(64 * 20 + 2, f's_lshl_b32 s{sT0}, s{sH}, 20')
        k = W.scalar(k + 1, f's_add_u32 s{sT0}, s{sT0}, {KV - 65536}')
        k = W.scalar(k + 1, f's_lshl_b32 s{sT1}, s{sJ}, 16')
        k = W.scalar(k + 1, f's_sub_u32 s{sB + 2}, {32 * 32768 + 65536}, s{sT1}')
        while W.sc[k + 1] or W.sc[k + 2]:
            k += 1
        W.put(k + 1, f's_add_u32 s{sB}, s{P_WS}, s{sT0}')
        W.put(k + 1, f's_addc_u32 s{sB + 1}, s{P_WS + 1}, 0')
        k += 2
        k = W.scalar(k + 1, f's_lshl_b32 s{sG}, s{sW}, 13')
        k = W.scalar(k + 1, f's_add_u32 s{sG}, s{sG}, 65536')

        def group(g, hi, regs, add_after):
            g = W.scalar(g, f's_and_b32 m0, s{sG}, 0x1ffff')
            p = W.stream(self.kv_dma(regs), g + 1, hi, spread=False)
            g = W.scalar(p[-1] + 1, f's_add_u32 s{sG}, s{sG}, {add_after}')
            return g + 1
        g = group(64 * 21 + BAR + 10, 64 * 22 + 30, ('T', 0), 4096)
        g = group(g, 64 * 22 + 40, ('T', 0), 32768 - 4096)
        g = group(64 * 22 + BAR + 10, 64 * 23 + 30, ('T', 1), 4096)
        g = group(g, 64 * 23 + 40, ('T', 1), 32768 - 4096)
        g = W.scalar(g, f's_lshl_b32 s{sT0}, s{sW}, 12')
        g = W.scalar(g + 1, f's_sub_u32 s{sG}, s{sG}, s{sT0}')
        g = group(g + 1, 64 * 23 + 44, ('K2', 0), 16384)
        g = W.scalar(g, f's_add_u32 s{sG}, s{sG}, s{sT0}')
        assert g < 64 * 23 + BAR, g
        waits[23].append(('T', 0))
        g = group(64 * 23 + BAR + 1, 64 * 24 - 2, ('ST', -1), 4096)
        W.stream([f'v_accvgpr_write_b32 a{n}, 0' for n in range(128)], 64 * 20 + 4, 64 * 23 + 10)
        W.stream([f'v_add_u32 v{self.vA}, 0x10000, v{vL16}', f'v_add_u32 v{self.vB}, 0x10000, v{vL16}'], 64 * 22, 64 * 23, spread=False)
        for n in range(self.LOOK):
            W.stream([self.frag_read(n, 'K', self.vA, 0, -1)], 64 * 23 + BAR + 6 + n, 64 * 24 - 1, spread=False)

    def frag_read(self, n, kind, va, off, treg):
        return I(f'ds_read_b128 {ar(self.FR(n), 4)}, v{va} offset:{off + n * 1024}', lr=(kind, treg + 1 if kind == 'K' else treg))

    def sm(self, buf, kbs, streams):
        out = []
        late = None
        for kb in kbs:
            for s in streams:
                a = self.S(buf, kb, s)
                p = self.P(buf, s, kb >> 1) + 2 * (kb & 1)
                out.append(f'v_exp_f32 v{a}, v{a}')
                if late:
                    out.append(late)
                out += [f'v_exp_f32 v{a + 1}, v{a + 1}', f'v_exp_f32 v{a + 2}, v{a + 2}',
                        f'v_cvt_pk_bf16_f32 v{p}, v{a}, v{a + 1}', f'v_exp_f32 v{a + 3}, v{a + 3}']
                late = f'v_cvt_pk_bf16_f32 v{p + 1}, v{a + 2}, v{a + 3}'
        out += ['s_nop 0', late]
        return out

    def sm_reserve(self, ne, lo, hi):
        R = hi - lo + 1
        return [lo + (k * R) // ne for k in range(ne)] if ne else []

    def sm_place(self, W, buf, kbs, streams, res, allres, deadline):
        k = 0
        g = 0
        for kb in kbs:
            for s in streams:
                a = self.S(buf, kb, s)
                p = self.P(buf, s, kb >> 1) + 2 * (kb & 1)
                for r in range(4):
                    W.put(res[k + r], f'v_exp_f32 v{a + r}, v{a + r}')
                for hlf in range(2):
                    first = res[k + 2 * hlf + 1] + 1
                    dl = min(deadline(s), W.n - 1)
                    assert first <= dl, (first, dl)
                    g = first
                    while g <= dl and (g in allres or W.used(g) >= 2):
                        g += 1
                    if g > dl or g > first + 8:
                        g = first
                        while g < dl and g in allres:
                            g += 1
                    it = I(f'v_cvt_pk_bf16_f32 v{p + hlf}, v{a + 2 * hlf}, v{a + 2 * hlf + 1}')
                    W.va[g].insert(0, it)
                k += 4

    def ct_set(self, s, masked):
        out = []
        for kb in range(4):
            for r in range(4):
                m = self.sMask + 2 * (kb * 4 + r)
                if masked:
                    out.append(f'v_cndmask_b32 v{self.CT + kb * 4 + r}, v{self.vTmp}, v{self.NM(s)}, s[{m}:{m + 1}]')
                else:
                    out.append(f'v_mov_b32 v{self.CT + kb * 4 + r}, v{self.NM(s)}')
        return out

    def epilogue(self, s):
        rc = self.LL(s) + 1
        out = [f'v_rcp_f32 v{rc}, v{self.LL(s)}']
        for t in range(4):
            a, c2 = self.S(0, t, s), self.S(1, t, s)
            for k in range(4):
                out.append(f'v_accvgpr_read_b32 v{a + k}, a{self.O(2 * t, s) + k}')
            for k in range(4):
                out.append(f'v_accvgpr_read_b32 v{c2 + k}, a{self.O(2 * t + 1, s) + k}')
            for k in range(4):
                out.append(f'v_mul_f32 v{a + k}, v{a + k}, v{rc}')
            for k in range(4):
                out.append(f'v_mul_f32 v{c2 + k}, v{c2 + k}, v{rc}')
            out += [f'v_cvt_pk_bf16_f32 v{a}, v{a}, v{a + 1}', f'v_cvt_pk_bf16_f32 v{a + 1}, v{a + 2}, v{a + 3}',
                    f'v_cvt_pk_bf16_f32 v{a + 2}, v{c2}, v{c2 + 1}', f'v_cvt_pk_bf16_f32 v{a + 3}, v{c2 + 2}, v{c2 + 3}']
            out.append(I(f'buffer_store_dwordx4 v[{a}:{a + 3}], v{self.vTmp + 1 + t}, s[{sWS}:{sWS + 3}], s{self.sCtx + s} offen sc1', tag='ctxst'))
        return out

    def qk_mfmas(self, buf, streams, cfun):
        mf, frs = [], []
        for kb in range(4):
            m0 = len(mf)
            for t in range(4):
                frs.append((m0 + t, m0 + 4 * (len(streams) - 1) + t))
            for s in streams:
                d = self.S(buf, kb, s)
                for t in range(4):
                    c = cfun(kb, s) if t == 0 else vr(d, 4)
                    mf.append(f'v_mfma_f32_16x16x32_bf16 {vr(d, 4)}, {ar(self.FR(kb * 4 + t), 4)}, {ar(self.Q(s, t), 4)}, {c}')
        return mf, frs

    def body(self, name, par, ncur, nnext, extra=(), tail=(), dma=(True, True), look=True, ct=True, head=()):
        b = self.blk(name)
        cur, nxt = list(range(4 - ncur, 4)), list(range(4 - nnext, 4))
        cb, nb = par, 1 - par
        mf, use = [], []
        if nnext:
            mf, use = self.qk_mfmas(nb, nxt, lambda kb, s: vr(self.CT + 4 * kb, 4) if (ct and s == nxt[0]) else vr(self.NM(s), 4))
        h1 = len(mf)
        vuse = []
        for db in range(8):
            m0 = len(mf)
            for kc in range(2):
                vuse.append((m0 + kc, m0 + 2 * (ncur - 1) + kc))
            for s in cur:
                d = self.O(db, s)
                for kc in range(2):
                    mf.append(f'v_mfma_f32_16x16x32_bf16 {ar(d, 4)}, {ar(self.FR(db * 2 + kc), 4)}, {vr(self.P(cb, s, kc), 4)}, {ar(d, 4)}')
            if db % 2 == 1 and db // 2 >= 4 - ncur:
                s = db // 2
                for kc in range(2):
                    mf.append(f'v_mfma_f32_16x16x32_bf16 {vr(self.LL(s), 4)}, {vr(self.vOnes, 4)}, {vr(self.P(cb, s, kc), 4)}, {vr(self.LL(s), 4)}')
        W = Weave(mf)
        n = len(mf)
        LOOK = self.LOOK
        if par == 0:
            kq, vq, lq = (self.vA, 32768), (self.vA, 16384), (self.vB, 0)
        else:
            kq, vq, lq = (self.vB, 0), (self.vA, 49152), (self.vB, 32768)
        seq = []
        if nnext:
            seq += [(use[i][0], use[i][1], self.frag_read(i, 'K', *kq, 0)) for i in range(16)]
        seq += [(vuse[i][0], vuse[i][1], self.frag_read(i, 'V', *vq, 0)) for i in range(16)]
        nseq = len(seq)
        if look == 'V':
            nv = (self.vA, 49152)
            seq += [(None, None, self.frag_read(i, 'V', *nv, 1)) for i in range(LOOK)]
        elif look:
            seq += [(None, None, self.frag_read(i, 'K', *lq, 1)) for i in range(LOOK)]
        def tau(i):
            if nnext and i < 16:
                return (h1 * i) // 16
            i -= nseq - 16
            return h1 + ((n - h1) * i) // 16
        xg = tau(nseq - LOOK) - 1 if look else None
        r1 = self.sm_reserve(8 * ncur, 1, h1 - 1) if nnext else []
        r2 = self.sm_reserve(8 * nnext, h1 + 2, n - 3)
        res = set(r2) | (set(r1) if 4 * len(r1) <= 3 * h1 else set())
        if par == 0:
            W.put(0, f'v_xor_b32 v{self.vB}, 0x10000, v{self.vB}')
        g = 0
        lastv = 0
        for i in range(LOOK, len(seq)):
            lo = max(g, tau(i - LOOK))
            if i >= 16:
                lo = max(lo, seq[i - 16][1])
            if i >= nseq:
                lo = max(lo, xg + 1)
            while lo < n - 1 and (W.used(lo) >= 2 or lo in res):
                lo += 1
            assert seq[i][0] is None or lo < seq[i][0] - 2, (name, i, lo, seq[i][0])
            W.put(lo, seq[i][2])
            g = lo
            if i == nseq - 1:
                lastv = lo
        if look:
            W.put(xg - 1, f's_waitcnt vmcnt({8 if dma[0] else 0})')
            W.put(xg, 's_barrier')

        def free(k, hi):
            while k < hi and (W.used(k) >= 2 or k in res):
                k += 1
            return k
        if par == 1 and look:
            W.put(free(lastv + 1, n - 1), f'v_xor_b32 v{self.vA}, 0x10000, v{self.vA}')

        def group(lo, hi, reg, add):
            g = W.scalar(lo, f's_and_b32 m0, s{sG}, 0x1ffff')
            step = max(1, (hi - g - 2) // 4)
            k = g + 1
            for it in self.kv_dma(reg):
                k = free(k, hi)
                W.put(k, it)
                lastk = k
                k += step
            W.scalar(min(lastk + 1, n - 1), f's_add_u32 s{sG}, s{sG}, {add}')
        if dma[0]:
            group(1, max(h1 - 2, 8), ('ST', -1), 32768 - 4096)
        if dma[1]:
            group(xg + 1, n - 5, ('ST', 0), 4096)
        pre = []
        if nnext:
            self.sm_place(W, cb, (2, 3), cur, r1, res, lambda s: h1 + 2 * cur.index(s) - 2)
            self.sm_place(W, nb, (0, 1), nxt, r2, res, lambda s: n - 1)
        else:
            pre = self.sm(cb, (2, 3), cur)
        for (lst, lo, hi) in extra:
            lo = {'h': h1 + 1}.get(lo, lo)
            rest = []
            k = lo
            for it in lst:
                it = it if isinstance(it, I) else I(it)
                while k < n - 1 and (W.used(k) + it.slots() > 2 or (it.kind == 'vmem' and W.va[k])):
                    k += 1
                W.put(k, it, post=True)
        for k, it in enumerate(tail):
            it = it if isinstance(it, I) else I(it)
            if it.kind == 'salu' and it.tag != 'late':
                W.scalar(n - len(tail) - 2 + k, it)
            else:
                W.put(n - 1, it, post=True)
        b(list(head))
        if pre:
            b(pre)
            b('s_nop 1')
        W.emit(b)
        pend = [set(seq[i][2].wr) for i in range(LOOK)]
        b.ins, out = auto_lgkm(b.ins, pend)
        print(f'body {name}: {n} mfma, estimated cycles {W.cycles()} (+{len(pre)} pre)', file=sys.stderr)
        return b

    def attention(self):
        T = self.vTmp
        b = self.blk('attpro0')
        b(f'v_lshrrev_b32 v{T}, 4, v{vL16}')
        b(f'v_and_b32 v{T + 1}, 15, v{T}')
        b(f'v_lshrrev_b32 v{T}, 4, v{T}')
        b(f'v_lshlrev_b32 v{T}, 2, v{T}')
        b(f'v_sub_u32 v{T}, v{T + 1}, v{T}')
        b(f's_lshl_b32 s{sT0}, s{sW}, 4')
        b(f'v_add_u32 v{T}, s{sT0}, v{T}')
        for kb in range(4):
            for r in range(4):
                m = self.sMask + 2 * (kb * 4 + r)
                b(f'v_cmp_le_i32 s[{m}:{m + 1}], {16 * kb + r}, v{T}')
        for k in range(4):
            b(f'v_mov_b32 v{self.vOnes + k}, 0x3f803f80')
        b(f's_lshl_b32 s{sT0}, s{sH}, 14')
        b(f's_lshl_b32 s{sT1}, s{sW}, 10')
        b(f's_add_u32 s{sT0}, s{sT0}, s{sT1}')
        b(f's_lshl_b32 s{sT1}, s{sJ}, 20')
        b(f's_add_u32 s{sT2}, s{sT0}, s{sT1}')
        b(f's_sub_u32 s{sT3}, s{sT0}, s{sT1}')
        b(f's_add_u32 s{self.sCtx}, s{sT2}, {CTX}')
        b(f's_add_u32 s{self.sCtx + 1}, s{sT2}, {CTX + (1 << 19)}')
        b(f's_add_u32 s{self.sCtx + 2}, s{sT3}, {CTX + (30 << 19)}')
        b(f's_add_u32 s{self.sCtx + 3}, s{sT3}, {CTX + (31 << 19)}')
        for t in range(4):
            b(f'v_add_u32 v{T + 1 + t}, {t * 4096}, v{vL16}')
        b(f'v_mov_b32 v{T}, {fl(-BIG)}')
        b(f's_bfe_u32 s{sHook}, s2, 0x20003')
        b(f's_sub_u32 s{sHook}, -1, s{sHook}')
        b = self.blk('attpro')
        b('Latt:')
        for s in range(4):
            for k in range(4):
                b(f'v_mov_b32 v{self.LL(s) + k}, 0')
        for k in range(16):
            b(f'v_mov_b32 v{self.CT + k}, 0')
        b(f's_cmp_eq_u32 s{sJ}, 0')
        b('s_cbranch_scc1 Lmask0')
        b('Lmask0_back:')
        c = self.cold
        c('Lmask0:')
        for k in range(16):
            m = self.sMask + 2 * k
            c(f'v_cndmask_b32 v{self.CT + k}, v{T}, v{self.CT + k}, s[{m}:{m + 1}]')
        c('s_nop 1')
        c('s_branch Lmask0_back')
        st = [0, 1, 2, 3]
        mf, use = self.qk_mfmas(0, st, lambda kb, s: vr(self.CT + 4 * kb, 4) if s == 0 else ('0' if kb < 2 else vr(self.NM(s), 4)))
        W = Weave(mf)
        LOOK = self.LOOK
        seq = [(use[i][0], use[i][1], self.frag_read(i, 'K', self.vA, 0, -1)) for i in range(16)]
        seq += [(None, None, self.frag_read(i, 'K', self.vA, 32768, 0)) for i in range(LOOK)]
        xg = 46
        g = 0
        for i in range(LOOK, len(seq)):
            lo = max(g, seq[i - LOOK][0] if i < 16 else max(xg + 1, seq[i - 16][1]))
            while W.mem[lo]:
                lo += 1
            W.put(lo, seq[i][2])
            g = lo
        W.put(xg - 1, 's_waitcnt vmcnt(8)')
        W.put(xg, 's_barrier')
        mx = [[] for _ in st]
        for s in st:
            a, m, t = self.S(0, 0, s), self.NM(s) + 1, self.NM(s) + 2
            L = mx[s]
            L.append(f'v_max3_f32 v{m}, v{a}, v{a + 1}, v{a + 2}')
            L.append(f'v_max_f32 v{m}, v{m}, v{a + 3}')
            for w in (16, 32):
                L.append(f'v_mov_b32 v{t}, v{m}')
                L.append(f'v_permlane{w}_swap_b32 v{m}, v{t}')
                L.append(f'v_max_f32 v{m}, v{m}, v{t}')
            L.append(f'v_sub_f32 v{self.NM(s)}, 0, v{m}')
            for k in range(1, 4):
                L.append(f'v_mov_b32 v{self.NM(s) + k}, v{self.NM(s)}')
        mxl = [x for p in zip(*mx) for x in p]
        mxl += [f'v_add_f32 v{self.CT + k}, v{self.CT + k}, v{self.NM(0)}' for k in range(8, 16)]
        W.stream(mxl, 21, 30, spread=False)
        W.put(31, 's_nop 0', post=True)
        sub = lambda kb: [f'v_add_f32 v{self.S(0, kb, s) + k}, v{self.S(0, kb, s) + k}, v{self.NM(s)}' for s in st for k in range(4)]
        smx = self.sm(0, (0, 1), st)
        W.stream(sub(0) + smx[:8] + sub(1) + smx[8:20], 32, 63, spread=False)
        W.emit(b)
        rest = smx[20:]
        b(rest)
        pend = [set(seq[i][2].wr) for i in range(LOOK)]
        b.ins, _ = auto_lgkm(b.ins, pend)
        print('att prologue estimated cycles', W.cycles(), '+', len(rest), file=sys.stderr)
        b(f's_mov_b32 s{sCnt}, s{sJ}')
        b(f's_lshl_b32 s{sCnt2}, s{sJ}, 1')
        b(f's_sub_u32 s{sCnt2}, 14, s{sCnt2}')
        b(f's_cmp_eq_u32 s{sJ}, 0')
        b('s_cbranch_scc1 L43')
        b(self.ct_set(0, False))
        b('.p2align 6')

        def rare_mask(lbl, s):
            c(f'{lbl}:')
            c('s_nop 2')
            c(self.ct_set(s, True))
            c('s_nop 1')
            c(f's_branch {lbl}_back')

        hook = lambda n: self.hook(n)
        self.body('b44e', 0, 4, 4, ct=False, head=['L44:'],
                  tail=[f's_sub_u32 s{sCnt}, s{sCnt}, 1', f's_cmp_eq_u32 s{sCnt}, 0', 's_cbranch_scc1 Lm44', 'Lm44_back:'])
        rare_mask('Lm44', 0)
        self.body('b44o', 1, 4, 4, tail=hook(0) + [f's_cbranch_scc1 L44'])
        self.body('b43', 0, 4, 3, head=['L43:', 's_nop 1'] + self.ct_set(1, True) + ['s_nop 1'],
                  extra=[(self.ct_set(2, False), 'h', None)],
                  tail=[f's_cmp_eq_u32 s{sCnt2}, 0', 's_cbranch_scc1 Lm32', 'Lm32_back:'])
        rare_mask('Lm32', 2)
        self.body('b32', 1, 3, 2, extra=[(self.epilogue(0), 4, None)])
        b = self.blk('epi1')
        b('s_nop 7')
        e = self.epilogue(1)
        b(e[0]); b(e[1:])
        b(hook(1))
        b('s_cbranch_scc0 L21')
        b('.p2align 6')
        self.body('b22e', 0, 2, 2, ct=False, head=['L22:'],
                  tail=[f's_sub_u32 s{sCnt2}, s{sCnt2}, 1', f's_cmp_eq_u32 s{sCnt2}, 0', 's_cbranch_scc1 Lm22', 'Lm22_back:'])
        rare_mask('Lm22', 2)
        self.body('b22o', 1, 2, 2, tail=hook(2) + [f's_cbranch_scc1 L22'])
        self.body('b21', 0, 2, 1, head=['L21:', 's_nop 1'] + self.ct_set(3, True) + ['s_nop 1'], dma=(False, False), look='V')
        self.body('b10', 1, 1, 0, dma=(False, False), look=False, extra=[(self.epilogue(2), 0, None)])
        b = self.blk('epi3')
        b('s_nop 7')
        b(self.epilogue(3))
        b(f'v_max3_u32 v{self.CT}, v{self.LL(0)}, v{self.LL(1)}, v{self.LL(2)}')
        b(f'v_max_u32 v{self.CT}, v{self.CT}, v{self.LL(3)}')
        b(f'v_cmp_le_u32 vcc, {fl(2.0 ** 64)}, v{self.CT}')
        b('s_nop 1')
        b('s_cbranch_vccnz Lslow')
        b('Lslow_back:')
        self.side()
        self.slow()

    def hook(self, n):
        cnt = sCnt if n == 0 else sCnt2
        c = self.cold
        c(f'Lhk{n}:')
        c(f's_call_b64 s[{sRet}:{sRet + 1}], Lside')
        c(f's_branch Lhk{n}_back')
        return [f's_add_u32 s{sHook}, s{sHook}, 1', f's_cmp_lt_u32 s{sHook}, 4', f's_cbranch_scc1 Lhk{n}', f'Lhk{n}_back:',
                I(f's_cmp_lg_u32 s{cnt}, 0', tag='late')]

    def side(self):
        sU0, sU1, sU2, sU3, sGw, sSt = 66, 67, 68, 69, 70, 71
        D, T = 64, 100
        blocks = []

        def common(b):
            b(f's_lshl_b32 s{sGw}, s2, 2')
            b(f's_add_u32 s{sGw}, s{sGw}, s{sW}')
            b(f's_lshl_b32 s{sSt}, s{sW}, 13')
            b(f's_add_u32 s{sSt}, s{sSt}, 0x20000')
            b(f'v_lshrrev_b32 v{T}, 7, v{vL16}')
            b(f'v_and_b32 v{T + 1}, 6, v{T}')
            b(f'v_lshlrev_b32 v{T + 1}, 4, v{T + 1}')
            b(f'v_and_b32 v{T + 2}, 0x70, v{vL16}')
            b(f'v_xor_b32 v{T + 1}, v{T + 1}, v{T + 2}')

        def win_idx(b):
            b(f's_mul_i32 s{sU0}, s{sGw}, 2341')
            b(f's_lshr_b32 s{sU0}, s{sU0}, 16')
            b(f's_mul_i32 s{sU1}, s{sU0}, 28')
            b(f's_sub_u32 s{sU1}, s{sGw}, s{sU1}')

        def dma(b, va, srd, so, n, reg):
            b(f'buffer_load_dwordx4 v{va}, s[{srd}:{srd + 3}], s{so} offen{f" offset:{n * 1024}" if n else ""} lds', lw=reg)

        b = Block('side0'); blocks.append(b)
        b('Lside:')
        common(b)
        b(f's_cmp_eq_u32 s{sHook}, 1'); b('s_cbranch_scc1 Lside1')
        b(f's_cmp_eq_u32 s{sHook}, 2'); b('s_cbranch_scc1 Lside2')
        b(f's_cmp_eq_u32 s{sHook}, 3'); b('s_cbranch_scc1 Lside3')
        b(f'v_lshl_add_u32 v{T + 3}, v{T}, 10, v{T + 1}')
        self.srd(b, sA, P_WO, 4 << 20)
        b(f's_lshr_b32 s{sU0}, s{sGw}, 3')
        b(f's_lshl_b32 s{sU0}, s{sU0}, 15')
        b(f's_and_b32 s{sU1}, s{sGw}, 7')
        b(f's_lshl_b32 s{sU1}, s{sU1}, 7')
        b(f's_add_u32 s{sU0}, s{sU0}, s{sU1}')
        b(f's_mov_b32 m0, s{sSt}')
        for n in range(4):
            b(f's_add_u32 s{sU2}, s{sU0}, {n * 7168}')
            dma(b, T + 3, sA, sU2, n, ('SD', 0))
        b(f's_add_u32 m0, s{sSt}, 4096')
        b(f's_cmp_lt_u32 s{sGw}, 448'); b('s_cbranch_scc1 Lside0in')
        b(f's_cmp_ge_u32 s{sGw}, 672'); b('s_cbranch_scc1 Lside_ret')
        self.srd(b, sC, P_WOUT, 896 * 1024)
        b(f's_sub_u32 s{sU0}, s{sGw}, 448')
        b(f's_lshr_b32 s{sU0}, s{sU0}, 3')
        b(f's_mul_i32 s{sU2}, s{sU0}, 37')
        b(f's_lshr_b32 s{sU2}, s{sU2}, 8')
        b(f's_mul_i32 s{sU3}, s{sU2}, 7')
        b(f's_sub_u32 s{sU0}, s{sU0}, s{sU3}')
        b(f's_mul_i32 s{sU2}, s{sU2}, 14')
        b(f's_lshl_b32 s{sU3}, s{sU0}, 1')
        b(f's_cmp_ge_u32 s{sU0}, 3')
        b(f's_cselect_b32 s{sT0}, 1, 0')
        b(f's_add_u32 s{sU3}, s{sU3}, s{sT0}')
        b(f's_cmp_eq_u32 s{sU0}, 6')
        b(f's_cselect_b32 s{sU3}, 6, s{sU3}')
        b(f's_cselect_b32 s{sT0}, 7, 1')
        b(f's_lshl_b32 s{sT0}, s{sT0}, 14')
        b(f's_add_u32 s{sU2}, s{sU2}, s{sU3}')
        b(f's_lshl_b32 s{sU2}, s{sU2}, 14')
        b(f's_add_u32 s{sU2}, s{sU2}, s{sU1}')
        b(f's_add_u32 s{sU3}, s{sU2}, s{sT0}')
        dma(b, T + 3, sC, sU2, 0, ('SD', 0))
        b(f's_add_u32 s{sU2}, s{sU2}, 7168')
        dma(b, T + 3, sC, sU2, 1, ('SD', 0))
        b(f's_sub_u32 s{sU2}, s{sU3}, 2048')
        dma(b, T + 3, sC, sU2, 2, ('SD', 0))
        b(f's_add_u32 s{sU2}, s{sU3}, {8192 - 3072}')
        dma(b, T + 3, sC, sU2, 3, ('SD', 0))
        b('Lside_ret:')
        b(f's_setpc_b64 s[{sRet}:{sRet + 1}]')
        b = Block('side0in'); blocks.append(b)
        b('Lside0in:')
        self.srd(b, sC, P_WIN, 512 * 3584)
        win_idx(b)
        b(f'v_and_b32 v{T + 2}, 4, v{T}')
        b(f'v_add_u32 v{T + 2}, v{T + 2}, v{T}')
        b(f'v_mul_u32_u24 v{T + 2}, 3584, v{T + 2}')
        b(f'v_add_u32 v{T + 2}, v{T + 2}, v{T + 1}')
        b(f's_mul_i32 s{sU0}, s{sU0}, {32 * 3584}')
        b(f's_lshl_b32 s{sU1}, s{sU1}, 7')
        b(f's_add_u32 s{sU0}, s{sU0}, s{sU1}')
        for n, ro in enumerate((0, 16, 4, 20)):
            b(f's_add_u32 s{sU2}, s{sU0}, {ro * 3584 - n * 1024}')
            dma(b, T + 2, sC, sU2, n, ('SD', 0))
        b(f's_setpc_b64 s[{sRet}:{sRet + 1}]')
        b = Block('side1'); blocks.append(b)
        b('Lside1:')
        A = T + 4
        b(f'v_lshrrev_b32 v{T + 2}, 6, v{vL16}')
        b(f'v_lshlrev_b32 v{T + 2}, 7, v{T + 2}')
        b(f'v_add_u32 v{T + 2}, s{sSt}, v{T + 2}')
        b(f'v_and_b32 v{T + 3}, 3, v{T}')
        b(f'v_lshlrev_b32 v{T + 3}, 5, v{T + 3}')
        b(f'v_and_b32 v{A}, 0x30, v{vL16}')
        b(f'v_lshrrev_b32 v{A + 2}, 1, v{A}')
        b(f'v_xor_b32 v{A}, v{A}, v{T + 3}')
        b(f'v_add_u32 v{A}, v{A}, v{T + 2}')
        b(f'v_xor_b32 v{A + 1}, 64, v{A}')
        b(f'v_add3_u32 v{A + 2}, v{A + 2}, v{T + 3}, v{T + 2}')
        for mb in range(4):
            for t in range(2):
                b(f'ds_read_b64_tr_b16 v[{D + 4 * mb + 2 * t}:{D + 4 * mb + 2 * t + 1}], v{A + (mb >> 1)} offset:{2048 * t + 8 * (mb & 1)}', lr=('SD', 0))
        b(f's_and_b32 s{sU0}, s{sGw}, 7')
        b(f's_lshl_b32 s{sU1}, s{sU0}, 7')
        b(f's_lshr_b32 s{sU2}, s{sGw}, 3')
        b(f's_add_u32 s{sU1}, s{sU1}, s{sU2}')
        b(f's_lshl_b32 s{sU1}, s{sU1}, 12')
        b(f's_add_u32 s{sT0}, s{sU1}, {WO}')
        b(f's_cmp_lt_u32 s{sGw}, 448'); b('s_cbranch_scc1 Lside1in')
        for mb in range(4):
            for t in range(2):
                b(f'ds_read_b64_tr_b16 v[{D + 16 + 4 * mb + 2 * t}:{D + 16 + 4 * mb + 2 * t + 1}], v{A + (mb >> 1)} offset:{4096 + 2048 * t + 8 * (mb & 1)}', lr=('SD', 0))
        b(f's_mul_i32 s{sU0}, s{sU0}, 28')
        b(f's_add_u32 s{sU0}, s{sU0}, s{sU2}')
        b(f's_sub_u32 s{sU0}, s{sU0}, 56')
        b(f's_lshl_b32 s{sU0}, s{sU0}, 12')
        b(f's_add_u32 s{sT1}, s{sU0}, {WOUT}')
        b(f's_cmp_lt_u32 s{sGw}, 672')
        b(f's_cselect_b32 s{sT1}, s{sT1}, {OOB}')
        b('Lside1st:')
        self.srd(b, sA, P_WSP, 8 << 20)
        b(f'v_lshl_add_u32 v{T + 3}, v{T}, 12, v{T + 1}')
        b(f's_lshr_b32 s{sU0}, s{sGw}, 5')
        b(f's_lshl_b32 s{sU0}, s{sU0}, 18')
        b(f's_and_b32 s{sU1}, s{sGw}, 31')
        b(f's_lshl_b32 s{sU1}, s{sU1}, 7')
        b(f's_add_u32 s{sU0}, s{sU0}, s{sU1}')
        b(f's_mov_b32 m0, s{sSt}')
        b('s_waitcnt lgkmcnt(0)')
        for n in range(8):
            if n == 4:
                b(f's_add_u32 m0, s{sSt}, 4096')
            b(f's_add_u32 s{sU2}, s{sU0}, {n * 32768 - (n & 3) * 1024}')
            dma(b, T + 3, sA, sU2, n & 3, ('SD', 1))
        for n in range(8):
            b(f'buffer_store_dwordx4 v[{D + 4 * n}:{D + 4 * n + 3}], v{vL16}, s[{sWS}:{sWS + 3}], s{sT0 if n < 4 else sT1} offen{f" offset:{(n & 3) * 1024}" if n & 3 else ""} sc1')
        b('s_nop 0')
        b(f's_setpc_b64 s[{sRet}:{sRet + 1}]')
        b = Block('side1in'); blocks.append(b)
        b('Lside1in:')
        for nb in range(4):
            if nb:
                b(f'v_xor_b32 v{A + 3}, {32 * nb}, v{A + 2}')
            for t in range(2):
                b(f'ds_read_b64_tr_b16 v[{D + 16 + 4 * nb + 2 * t}:{D + 16 + 4 * nb + 2 * t + 1}], v{A + (3 if nb else 2)} offset:{4096 + 2048 * t}')
        win_idx(b)
        b(f's_lshl_b32 s{sU1}, s{sU1}, 4')
        b(f's_add_u32 s{sU0}, s{sU0}, s{sU1}')
        b(f's_lshl_b32 s{sU0}, s{sU0}, 12')
        b(f's_add_u32 s{sT1}, s{sU0}, {WIN}')
        b('s_branch Lside1st')
        b = Block('side2'); blocks.append(b)
        b('Lside2:')
        b(f'v_bfe_u32 v{T + 2}, v{vL16}, 4, 4')
        b(f'v_and_b32 v{T + 3}, 6, v{T + 2}')
        b(f'v_lshrrev_b32 v{A}, 9, v{vL16}')
        b(f'v_xor_b32 v{T + 3}, v{T + 3}, v{A}')
        b(f'v_lshlrev_b32 v{T + 3}, 4, v{T + 3}')
        b(f'v_lshl_add_u32 v{T + 3}, v{T + 2}, 7, v{T + 3}')
        b(f'v_bfe_u32 v{A}, v{vL16}, 8, 1')
        b(f'v_lshl_add_u32 v{T + 3}, v{A}, 3, v{T + 3}')
        b(f'v_add_u32 v{A}, s{sSt}, v{T + 3}')
        for k in range(1, 4):
            b(f'v_xor_b32 v{A + k}, {32 * k}, v{A}')
        for ks in range(2):
            for tb in range(4):
                for t in range(2):
                    r = D + 4 * (ks * 4 + tb) + 2 * t
                    b(f'ds_read_b64 v[{r}:{r + 1}], v{A + 2 * ks + t} offset:{2048 * tb}', lr=('SD', 1))
        b(f's_lshl_b32 s{sU0}, s{sGw}, 13')
        b(f's_add_u32 s{sT0}, s{sU0}, {WSP}')
        b(f's_add_u32 s{sT1}, s{sU0}, {WSP + 4096}')
        for n in range(8):
            b(f's_waitcnt lgkmcnt({14 - 2 * n})')
            b(f'buffer_store_dwordx4 v[{D + 4 * n}:{D + 4 * n + 3}], v{vL16}, s[{sWS}:{sWS + 3}], s{sT0 if n < 4 else sT1} offen{f" offset:{(n & 3) * 1024}" if n & 3 else ""} sc1')
        b('s_nop 0')
        b(f's_setpc_b64 s[{sRet}:{sRet + 1}]')
        b = Block('side3'); blocks.append(b)
        b('Lside3:')
        b(f's_lshr_b32 s{sU0}, s2, 5')
        b(f's_lshl_b32 s{sU0}, s{sU0}, 7')
        b(f's_add_u32 s{sU0}, s{sU0}, {FLG + F_WT * 128}')
        b(self.signal(f's{sU0}'))
        b(f's_setpc_b64 s[{sRet}:{sRet + 1}]')
        for x in blocks:
            self.B[x.name] = x
            self.cold.ins += x.ins

    def slow(self):
        b = Block('slow')
        T = self.vTmp
        KF, SS, PP = 64, 0, 16
        b('Lslow:')
        b('s_waitcnt vmcnt(0) lgkmcnt(0)')
        for s in range(4):
            nm = self.NM(s)
            b(f's_lshl_b32 s{sT0}, s{sJ}, 1')
            if s < 2:
                b(f's_add_u32 s{sT0}, s{sT0}, {s}')
            else:
                b(f's_sub_u32 s{sT0}, {28 + s}, s{sT0}')
            for ps in range(2):
                L = f'Lslow{s}{ps}'
                if ps == 0:
                    b(f'v_mov_b32 v{nm}, 0')
                    b(f'v_mov_b32 v{nm + 1}, {fl(-BIG)}')
                else:
                    for db in range(8):
                        for k in range(4):
                            b(f'v_accvgpr_write_b32 a{self.O(db, s) + k}, 0')
                    for k in range(4):
                        b(f'v_mov_b32 v{self.LL(s) + k}, 0')
                b(self.ct_set(s, False))
                b(f's_mov_b32 s{sT1}, 0')
                b(f's_mov_b32 s{sG}, 65536')
                b(f'{L}:')
                for n in range(16 * (ps + 1)):
                    dst = vr(KF + 4 * n, 4) if n < 16 else ar(192 + 4 * (n - 16), 4)
                    b(f'buffer_load_dwordx4 {dst}, v{vL16}, s[{sB}:{sB + 3}], s{sG} offen{f" offset:{(n & 3) * 1024}" if n & 3 else ""} sc1')
                    if n & 3 == 3:
                        b(f's_add_u32 s{sG}, s{sG}, 4096')
                if ps == 0:
                    b(f's_add_u32 s{sG}, s{sG}, 16384')
                b(f's_cmp_lg_u32 s{sT1}, s{sT0}')
                b(f's_cbranch_scc1 {L}n')
                b(self.ct_set(s, True))
                b(f'{L}n:')
                b('s_waitcnt vmcnt(0)')
                b('s_nop 1')
                for kb in range(4):
                    for t in range(4):
                        c = vr(self.CT + 4 * kb, 4) if t == 0 else vr(SS + 4 * kb, 4)
                        b(f'v_mfma_f32_16x16x32_bf16 {vr(SS + 4 * kb, 4)}, {vr(KF + 4 * (kb * 4 + t), 4)}, {ar(self.Q(s, t), 4)}, {c}')
                b('s_nop 7')
                if ps == 0:
                    for k in range(0, 16, 2):
                        b(f'v_max3_f32 v{nm + 1}, v{nm + 1}, v{SS + k}, v{SS + k + 1}')
                else:
                    for k in range(16):
                        b(f'v_exp_f32 v{SS + k}, v{SS + k}')
                    b('s_nop 0')
                    for k in range(8):
                        b(f'v_cvt_pk_bf16_f32 v{PP + k}, v{SS + 2 * k}, v{SS + 2 * k + 1}')
                    b('s_nop 1')
                    for db in range(8):
                        for kc in range(2):
                            d = self.O(db, s)
                            b(f'v_mfma_f32_16x16x32_bf16 {ar(d, 4)}, {ar(192 + 4 * (db * 2 + kc), 4)}, {vr(PP + 4 * kc, 4)}, {ar(d, 4)}')
                    for kc in range(2):
                        b(f'v_mfma_f32_16x16x32_bf16 {vr(self.LL(s), 4)}, {vr(self.vOnes, 4)}, {vr(PP + 4 * kc, 4)}, {vr(self.LL(s), 4)}')
                    b('s_nop 7')
                b(f's_add_u32 s{sT1}, s{sT1}, 1')
                b(f's_cmp_le_u32 s{sT1}, s{sT0}')
                b(f's_cbranch_scc1 {L}')
                if ps == 0:
                    for w in (16, 32):
                        b(f'v_mov_b32 v{nm + 2}, v{nm + 1}')
                        b('s_nop 1')
                        b(f'v_permlane{w}_swap_b32 v{nm + 1}, v{nm + 2}')
                        b(f'v_max_f32 v{nm + 1}, v{nm + 1}, v{nm + 2}')
                    b(f'v_sub_f32 v{nm}, 0, v{nm + 1}')
            b(self.epilogue(s))
            b('s_nop 1')
        b('s_branch Lslow_back')
        self.B['slow'] = b
        self.cold.ins += b.ins

    vH = 244
    vX, vR = 224, 228
    vP, vPa = 232, 233

    def ld(self, dst, va, so, off=0, n=4, srd=sWS, tag=None, sc=' sc1'):
        op = {4: 'dwordx4', 2: 'dwordx2', 1: 'dword'}[n]
        return I(f'buffer_load_{op} {dst}, v{va}, s[{srd}:{srd + 3}], {so} offen{f" offset:{off}" if off else ""}{sc}', tag=tag)

    def st(self, src, va, so, off=0, n=4, srd=sWS, tag=None, sc=' sc1'):
        op = {4: 'dwordx4', 2: 'dwordx2', 1: 'dword'}[n]
        return I(f'buffer_store_{op} {src}, v{va}, s[{srd}:{srd + 3}], {so} offen{f" offset:{off}" if off else ""}{sc}', tag=tag)

    def poll_now(self, b, target):
        b(self.poll_load(self.vP, self.vPa, tag='poll'))
        b(vmwait(lambda t: t == 'poll'))
        b(self.poll_check(self.vP, self.vPa, target))

    def publish(self, b, tags, soff):
        b(vmwait(lambda t: t in tags))
        b('s_barrier')
        b(self.signal(soff))

    def red_addr(self, b, base, stride):
        for t in range(4):
            b(f's_xor_b32 s{sT0}, s{sW}, {t}')
            b(f's_mul_i32 s{sT0}, s{sT0}, {stride}')
            if base:
                b(f's_add_u32 s{sT0}, s{sT0}, {base}')
            b(f'v_add_u32 v{self.vR + t}, s{sT0}, v{vL16}')

    def reduce(self, b, acc, nb, reg, tmp):
        for t in range(1, 4):
            for n in range(nb):
                b(f'ds_write_b128 v{self.vR + t}, {vr(acc(n, t), 4)} offset:{(t - 1) * 4 * nb * 1024 + n * 1024}', lw=(reg, 0))
        b('s_waitcnt lgkmcnt(0)')
        b('s_barrier')
        for n in range(nb):
            for t in range(1, 4):
                b(f'ds_read_b128 {vr(tmp + (n * 3 + t - 1) * 4, 4)}, v{self.vR} offset:{(t - 1) * 4 * nb * 1024 + n * 1024}', lr=(reg, 0))
        for n in range(nb):
            a, q = acc(n, 0), tmp + n * 12
            for k in (0, 2):
                b(f'v_pk_add_f32 {vr(a + k, 2)}, {vr(a + k, 2)}, {vr(q + k, 2)}')
            for k in (0, 2):
                b(f'v_pk_add_f32 {vr(q + 4 + k, 2)}, {vr(q + 4 + k, 2)}, {vr(q + 8 + k, 2)}')
            for k in (0, 2):
                b(f'v_pk_add_f32 {vr(a + k, 2)}, {vr(a + k, 2)}, {vr(q + 4 + k, 2)}')

    def add_bf16(self, b, a0, a1, src, t):
        for k in range(4):
            d = (a0 if k < 2 else a1) + 2 * (k & 1)
            b(f'v_lshlrev_b32 v{t + 2 * k}, 16, v{src + k}')
            b(f'v_and_b32 v{t + 2 * k + 1}, 0xffff0000, v{src + k}')
        for k in range(4):
            d = (a0 if k < 2 else a1) + 2 * (k & 1)
            b(f'v_pk_add_f32 {vr(d, 2)}, {vr(d, 2)}, {vr(t + 2 * k, 2)}')

    def pack8(self, dst, a0, a1):
        return [f'v_cvt_pk_bf16_f32 v{dst}, v{a0}, v{a0 + 1}', f'v_cvt_pk_bf16_f32 v{dst + 1}, v{a0 + 2}, v{a0 + 3}',
                f'v_cvt_pk_bf16_f32 v{dst + 2}, v{a1}, v{a1 + 1}', f'v_cvt_pk_bf16_f32 v{dst + 3}, v{a1 + 2}, v{a1 + 3}']

    def finish(self, b):
        b.ins, _ = resolve_vm(b.ins)
        b.ins, _ = auto_vm(b.ins)
        b.ins, _ = auto_lgkm(b.ins)

    sCx, sWo, sIn2, sIn1, sRt, sCt, sSp, sZ, sRb6, sCb6, sMl = 32, 33, 34, 35, 36, 37, 38, 39, 40, 41, 42
    vXa = 234

    def g4(self):
        b = self.blk('g4')
        vX, vR, vP, vPa, vXa = self.vX, self.vR, self.vP, self.vPa, self.vXa
        sCx, sWo, sIn2, sIn1, sRt, sCt, sMl = self.sCx, self.sWo, self.sIn2, self.sIn1, self.sRt, self.sCt, self.sMl
        NP1, NP = OPT.get('np1', 4), OPT.get('np', 14)
        RC = 10
        xr = 236
        acc = lambda mb, t: (mb * 4 + t) * 4
        cfr = lambda k, t: 64 + (k % RC) * 16 + t * 4
        wfr = lambda k, mb: (k % 16) * 16 + mb * 4
        b(f'v_and_b32 v{vPa}, 0x70, v{vL16}')
        b(f'v_lshlrev_b32 v{vPa}, 3, v{vPa}')
        b(f'v_add_u32 v{vPa}, {FLG + F_WT * 128}, v{vPa}')
        b(self.poll_load(vP, vPa, tag='poll'))
        b(f's_lshl_b32 s{sT0}, s{sW}, 17')
        b(f's_lshl_b32 s{sT1}, s{sH}, 19')
        b(f's_add_u32 s{sCx}, s{sT0}, s{sT1}')
        b(f's_add_u32 s{sCx}, s{sCx}, {CTX}')
        b(f's_lshl_b32 s{sT1}, s{sJ}, 19')
        b(f's_add_u32 s{sWo}, s{sT0}, s{sT1}')
        b(f's_add_u32 s{sWo}, s{sWo}, {WO}')
        for t in range(4):
            b(f's_xor_b32 s{sT0}, s{sW}, {t}')
            b(f's_lshl_b32 s{sT0}, s{sT0}, 10')
            b(f'v_add_u32 v{vX + t}, s{sT0}, v{vL16}')
        self.red_addr(b, 112 * 1024, 4096)
        b(f'v_and_b32 v{vXa}, 0xf0, v{vL16}')
        b(f'v_lshlrev_b32 v{vXa}, 6, v{vXa}')
        b(f'v_lshrrev_b32 v{xr}, 8, v{vL16}')
        b(f'v_lshl_add_u32 v{vXa}, v{xr}, 4, v{vXa}')
        b(f's_lshl_b32 s{sT0}, s{sH}, 16')
        b(f's_lshl_b32 s{sT1}, s{sW}, 14')
        b(f's_add_u32 s{sT0}, s{sT0}, s{sT1}')
        b(f's_lshl_b32 s{sT1}, s{sJ}, 7')
        b(f's_add_u32 s{sT0}, s{sT0}, s{sT1}')
        b(f'v_add_u32 v{vXa}, s{sT0}, v{vXa}')
        self.srd(b, sC, P_X, 2 << 20)
        b(f's_lshr_b32 s{sT0}, s2, 3')
        b(f's_and_b32 s{sRt}, s2, 7')
        b(f's_lshl_b32 s{sRt}, s{sRt}, 1')
        b(f's_cmp_ge_u32 s{sT0}, 14')
        b(f's_cselect_b32 s{sT1}, 14, 0')
        b(f's_cselect_b32 s{sT2}, 1, 0')
        b(f's_sub_u32 s{sCt}, s{sT0}, s{sT1}')
        b(f's_add_u32 s{sRt}, s{sRt}, s{sT2}')
        b(f's_lshl_b32 s{sMl}, s{sW}, 14')
        b(f's_lshl_b32 s{sT1}, s{sCt}, 16')
        b(f's_add_u32 s{sT1}, s{sT1}, s{sMl}')
        b(f's_add_u32 s{sT1}, s{sT1}, {WIN}')
        b(f's_cmp_ge_u32 s{sT0}, 28')
        b(f's_cselect_b32 s{sIn1}, {OOB}, s{sT1}')
        b(f's_add_u32 s{sIn2}, s{sIn1}, {14 << 16}')
        b(f's_lshl_b32 s{sT3}, s{sJ}, 2')
        b(f's_lshr_b32 s{sT0}, s{sH}, 3')
        b(f's_add_u32 s{sT3}, s{sT3}, s{sT0}')
        b(f's_lshl_b32 s{sT3}, s{sT3}, 7')
        b(f's_add_u32 s{sT3}, s{sT3}, {FLG + F_CTX * 128}')
        b(f's_lshr_b32 s{sT0}, s{sH}, 1')
        b(f's_sub_u32 s{sT1}, 15, s{sT0}')
        b(f's_min_u32 s{sT0}, s{sT0}, s{sT1}')
        b(f's_lshl_b32 s{sT0}, s{sT0}, 2')
        b(f's_add_u32 s{sT0}, s{sT0}, s{sW}')
        b(f's_lshl_b32 s{sT0}, s{sT0}, 7')
        b(f's_add_u32 s{sT2}, s{sT0}, {FLG + F_CTX * 128}')
        b('s_waitcnt vmcnt(0)')
        b(self.poll_check(vP, vPa, 32))
        b('s_barrier')
        b(self.signal(f's{sT3}'))
        b(self.stamp(0))
        b(f'v_mov_b32 v{vPa}, s{sT2}')

        def wl(k):
            return [self.ld(ar(wfr(k, mb), 4), vL16, f's{sWo}', mb * 1024) for mb in range(4)] + [I(f's_add_u32 s{sWo}, s{sWo}, 4096')]

        def cl(k):
            return [self.ld(vr(cfr(k, t), 4), vX + t, f's{sCx}') for t in range(4)] + [I(f's_add_u32 s{sCx}, s{sCx}, 4096')]
        for k in range(NP):
            b(wl(k))
        for c in range(2):
            b(self.ld(vr(xr + 4 * c, 4), vXa, '0', 64 * c, srd=sC, sc=''))
        self.poll_now(b, 8)
        b(self.stamp(0))
        DC = OPT.get('dc', 6)
        for k in range(DC):
            b(cl(k))
        mf = []
        for p in range(16):
            order = (0, 1, 2, 3) if p < 15 else (1, 2, 3, 0)
            for t in order:
                for mb in range(4):
                    for kk in range(2):
                        k = 2 * p + kk
                        d = vr(acc(mb, t), 4)
                        mf.append(f'v_mfma_f32_16x16x32_bf16 {d}, {ar(wfr(k, mb), 4)}, {vr(cfr(k, t), 4)}, {"0" if k == 0 else d}')
        W = Weave(mf)
        wk = NP
        for p in range(16):
            L = []
            for kk in range(2):
                if wk < 32 and wk < 2 * p + 16 and (wk - NP) * (32 - DC) < (32 - NP) * (2 * p + kk + 1):
                    L += wl(wk)
                    wk += 1
                if 2 * p + DC + kk < 32:
                    L += cl(2 * p + DC + kk)
            for q in {13: (0,), 14: (1, 2), 15: (3,)}.get(p, ()):
                L.append(I(f's_add_u32 m0, s{sMl}, {q * 4096}'))
                L += [I(f'buffer_load_dwordx4 v{vL16}, s[{sWS}:{sWS + 3}], s{sIn2} offen{f" offset:{n * 1024}" if n else ""} sc1 lds', lw=('WI', 0), tag='wi') for n in range(4)]
                L.append(I(f's_add_u32 s{sIn2}, s{sIn2}, 4096'))
            g = 32 * p
            for it in L:
                if it.kind == 'salu':
                    g = W.scalar(g, it) + (1 if ('x', 'm0') in it.wr else 0)
                else:
                    W.put(g, it)
                    g += 1
            assert g <= 32 * p + 32
        W.emit(b)
        b(self.stamp(200))
        self.reduce(b, acc, 4, 'R4', 64)
        for c in range(2):
            self.add_bf16(b, acc(2 * c, 0), acc(2 * c + 1, 0), xr + 4 * c, 64 + 8 * c)
        for c in range(2):
            b(self.pack8(self.vH + 4 * c, acc(2 * c, 0), acc(2 * c + 1, 0)))
        b(f's_lshl_b32 s{sT0}, s{sH}, 2')
        b(f's_add_u32 s{sT0}, s{sT0}, s{sW}')
        b(f's_lshl_b32 s{sT1}, s{sT0}, 14')
        b(f's_lshl_b32 s{sT2}, s{sJ}, 11')
        b(f's_add_u32 s{sT1}, s{sT1}, s{sT2}')
        b(f's_add_u32 s{sT1}, s{sT1}, {HH}')
        for c in range(2):
            b(self.st(vr(self.vH + 4 * c, 4), vL16, f's{sT1}', 1024 * c, tag='h'))
        S, Q, T = 80, 82, 84
        vals = [acc(mb, 0) + k for mb in range(4) for k in (0, 2)]
        b(f'v_pk_add_f32 {vr(S, 2)}, {vr(vals[0], 2)}, {vr(vals[1], 2)}')
        b(f'v_pk_mul_f32 {vr(Q, 2)}, {vr(vals[0], 2)}, {vr(vals[0], 2)}')
        for n, v in enumerate(vals[1:]):
            if n:
                b(f'v_pk_add_f32 {vr(S, 2)}, {vr(S, 2)}, {vr(v, 2)}')
            b(f'v_pk_fma_f32 {vr(Q, 2)}, {vr(v, 2)}, {vr(v, 2)}, {vr(Q, 2)}')
        b(f'v_add_f32 v{S}, v{S}, v{S + 1}')
        b(f'v_add_f32 v{S + 1}, v{Q}, v{Q + 1}')
        for w in (16, 32):
            b(f'v_mov_b32 v{T}, v{S}')
            b(f'v_mov_b32 v{T + 1}, v{S + 1}')
            b('s_nop 0')
            b(f'v_permlane{w}_swap_b32 v{S}, v{T}')
            b(f'v_permlane{w}_swap_b32 v{S + 1}, v{T + 1}')
            b(f'v_pk_add_f32 {vr(S, 2)}, {vr(S, 2)}, {vr(T, 2)}')
        b(f'v_mov_b32 v{T}, {OOB}')
        b(f'v_cmp_gt_u32 vcc, 256, v{vL16}')
        b(f's_lshl_b32 s{sT0}, s{sT0}, 10')
        b(f's_lshr_b32 s{sT1}, s{sJ}, 1')
        b(f'v_cndmask_b32 v{T}, v{T}, v{vL16}, vcc')
        b(f's_lshl_b32 s{sT1}, s{sT1}, 8')
        b(f's_add_u32 s{sT0}, s{sT0}, s{sT1}')
        b(f's_and_b32 s{sT1}, s{sJ}, 1')
        b(f's_lshl_b32 s{sT1}, s{sT1}, 3')
        b(f's_add_u32 s{sT0}, s{sT0}, s{sT1}')
        b(f's_add_u32 s{sT0}, s{sT0}, {HST}')
        b(self.st(vr(S, 2), T, f's{sT0}', n=2, tag='h'))
        b(f's_lshl_b32 s{sT3}, s{sH}, 7')
        b(f's_add_u32 s{sT3}, s{sT3}, {FLG + F_H * 128}')
        b(f's_bfe_u32 s{sT0}, s2, 0x20001')
        b(f's_lshl_b32 s{sT0}, s{sT0}, 3')
        b(f's_bfe_u32 s{sT1}, s2, 0x30003')
        b(f's_add_u32 s{self.sRb6}, s{sT0}, s{sT1}')
        b(f's_and_b32 s{sT0}, s2, 1')
        b(f's_lshl_b32 s{sT0}, s{sT0}, 2')
        b(f's_lshr_b32 s{sT1}, s2, 6')
        b(f's_add_u32 s{self.sCb6}, s{sT0}, s{sT1}')
        b(f's_lshl_b32 s{sT0}, s{self.sRb6}, 18')
        b(f's_lshl_b32 s{sT1}, s{sW}, 16')
        b(f's_add_u32 s{sT0}, s{sT0}, s{sT1}')
        b(f's_add_u32 s{self.sSp}, s{sT0}, {WSP}')
        self.publish(b, ('h',), f's{sT3}')
        b(self.stamp(0))
        b(f's_cmp_ge_u32 s2, 224')
        b('s_cbranch_scc1 Lidle5')
        self.finish(b)

    def wsp(self, k):
        return [self.ld(ar(k * 16 + 4 * t, 4), self.vX + t, f's{self.sSp}', tag='wsp') for t in range(4)] + [I(f's_add_u32 s{self.sSp}, s{self.sSp}, 4096')]

    def g5(self):
        b = self.blk('g5')
        vP, vPa = self.vP, self.vPa
        sIn1, sRt, sCt, sMl = self.sIn1, self.sRt, self.sCt, self.sMl
        sHs, sZs, sZf, sZ1, sK0, sZ2 = 43, 44, 45, 46, 47, 48
        sM0 = 52
        z2 = lambda nb, sb: (nb * 2 + sb) * 4
        z1 = lambda nb, sb: 32 + (nb * 2 + sb) * 4
        FF, NF = 64, 12
        o2 = lambda nb, sb: 112 + (nb * 2 + sb) * 4
        o1 = lambda nb, sb: 144 + (nb * 2 + sb) * 4
        cs2, cs1 = 176, 180
        rc, nc = 196, 198
        rr, nr = 200, 208
        T = 216
        vZ1, vCs, vKc, vB = 235, 236, 237, 238
        hf = lambda sb, ks: (ks * 2 + sb) * 4
        for q in range(4):
            b(f's_add_u32 m0, s{sMl}, {65536 + q * 4096}')
            b('s_nop 0')
            for n in range(4):
                b(f'buffer_load_dwordx4 v{vL16}, s[{sWS}:{sWS + 3}], s{sIn1} offen{f" offset:{n * 1024}" if n else ""} sc1 lds', lw=('WI', 1), tag='wi')
            b(f's_add_u32 s{sIn1}, s{sIn1}, 4096')
        b(f's_lshl_b32 s{sT0}, s{sRt}, 1')
        b(f's_lshr_b32 s{sT1}, s{sW}, 1')
        b(f's_add_u32 s{sT0}, s{sT0}, s{sT1}')
        b(f's_lshl_b32 s{sT0}, s{sT0}, 7')
        b(f's_add_u32 s{sT0}, s{sT0}, {FLG + F_H * 128}')
        b(f'v_mov_b32 v{vPa}, s{sT0}')
        b(self.poll_load(vP, vPa, tag='poll'))
        b(f's_lshl_b32 s{sT0}, s{sRt}, 2')
        b(f's_add_u32 s{sT0}, s{sT0}, s{sW}')
        b(f's_lshl_b32 s{sHs}, s{sT0}, 15')
        b(f's_add_u32 s{sHs}, s{sHs}, {HH}')
        b(f's_lshl_b32 s{sT3}, s{sT0}, 11')
        b(f's_add_u32 s{sT3}, s{sT3}, {HST}')
        b(f's_lshl_b32 s{sZs}, s{sT0}, 12')
        b(f's_add_u32 s{sZs}, s{sZs}, {ZST}')
        b(f's_lshl_b32 s{sZf}, s{sT0}, 7')
        b(f's_add_u32 s{sZf}, s{sZf}, {FLG + F_ZS * 128}')
        b(f's_mul_i32 s{sZ1}, s{sT0}, 56')
        b(f's_lshl_b32 s{sT1}, s{sCt}, 2')
        b(f's_add_u32 s{sZ1}, s{sZ1}, s{sT1}')
        b(f's_lshl_b32 s{sZ1}, s{sZ1}, 10')
        b(f's_add_u32 s{sZ1}, s{sZ1}, {Z1}')
        b(f's_mul_i32 s{sT0}, s{sT0}, 7')
        for nb in range(4):
            b(f's_add_u32 s{sT2}, s{sT1}, {nb}')
            b(f's_mul_i32 s{sZ2 + nb}, s{sT2}, 37')
            b(f's_lshr_b32 s{sZ2 + nb}, s{sZ2 + nb}, 8')
            b(f's_mul_i32 s{sZ2 + nb}, s{sZ2 + nb}, 441')
            b(f's_add_u32 s{sZ2 + nb}, s{sZ2 + nb}, s{sT2}')
            b(f's_add_u32 s{sZ2 + nb}, s{sZ2 + nb}, s{sT0}')
            b(f's_lshl_b32 s{sZ2 + nb}, s{sZ2 + nb}, 10')
            b(f's_add_u32 s{sZ2 + nb}, s{sZ2 + nb}, {Z2}')
        GK = 2 * math.sqrt(2 / math.pi) * math.log2(math.e)
        b(f's_mov_b32 s{sK0}, {fl(-GK)}')
        b(f'v_mov_b32 v{vKc}, {fl(-GK * 0.044715)}')
        b(f'v_add_u32 v{vZ1}, 0x10000, v{vL16}')
        b(f's_lshl_b32 s{sT0}, s{sW}, 10')
        b(f'v_add_u32 v{T}, s{sT0}, v{vL16}')
        b(f'v_add_u32 v{T + 1}, 0x10000, v{T}')
        b(f'v_add_u32 v{T + 2}, 0x20000, v{T}')
        b(f'v_add_u32 v{vCs}, 0x20000, v{vL16}')
        b(f'v_lshrrev_b32 v{vB}, 8, v{vL16}')
        b(f'v_lshlrev_b32 v{vB}, 4, v{vB}')
        for k in range(4):
            b(f'v_mov_b32 v{240 + k}, 0x3f803f80')
        for k in range(3):
            m = sum(1 << l for l in range(32) if l >> k & 1)
            b(f's_mov_b32 s{sM0 + 2 * k}, {hex(m)}')
            b(f's_mov_b32 s{sM0 + 2 * k + 1}, {hex(m)}')
        b(vmwait(lambda t: t == 'poll'))
        b(self.poll_check(vP, vPa, 8))
        b(self.stamp(0))
        for sb in range(2):
            b(self.ld(vr(o1(0, sb), 4), vL16, f's{sT3}', 1024 * sb))
        b(f's_add_u32 s{sT3}, s{sHs}, 16384')
        for ks in range(16):
            for sb in range(2):
                b(self.ld(ar(hf(sb, ks), 4), vL16, f's{sT3 if sb else sHs}', (ks & 3) * 1024))
            if ks & 3 == 3:
                b(f's_add_u32 s{sHs}, s{sHs}, 4096')
                b(f's_add_u32 s{sT3}, s{sT3}, 4096')
        b('s_barrier')
        c2, c1 = o2(0, 0), o2(1, 0)
        rd = [I(f'ds_read_b128 {vr(FF + 4 * (n % NF), 4)}, v{T + (n >> 4)} offset:{(n & 15) * 4096}', lr=('WI', n >> 4)) for n in range(32)]
        for n in range(NF):
            b(rd[n])
        for n in range(32):
            f = vr(FF + 4 * (n % NF), 4)
            if n < 16:
                b(f'v_mfma_f32_16x16x32_bf16 {vr(c2, 4)}, v[240:243], {f}, {"0" if n == 0 else vr(c2, 4)}')
            else:
                b(f'v_mfma_f32_16x16x32_bf16 {vr(c1, 4)}, {f}, v[240:243], {"0" if n == 16 else vr(c1, 4)}')
            if n + NF < 32:
                b(rd[n + NF])
        for sb in range(2):
            a = o1(0, sb)
            b(f'v_add_f32 v{a}, v{a}, v{a + 2}')
            b(f'v_add_f32 v{a + 1}, v{a + 1}, v{a + 3}')
        for w in (16, 32):
            for sb in range(2):
                a = o1(0, sb)
                b(f'v_mov_b32 v{a + 2}, v{a}')
                b(f'v_mov_b32 v{a + 3}, v{a + 1}')
            if w == 16:
                b(f'ds_write_b128 v{T + 2}, {vr(c2, 4)}', lw=('CS', 0))
                b(f'ds_write_b128 v{T + 2}, {vr(c1, 4)} offset:4096', lw=('CS', 0))
            for sb in range(2):
                a = o1(0, sb)
                b(f'v_permlane{w}_swap_b32 v{a}, v{a + 2}')
                b(f'v_permlane{w}_swap_b32 v{a + 1}, v{a + 3}')
            for sb in range(2):
                a = o1(0, sb)
                b(f'v_add_f32 v{a}, v{a}, v{a + 2}')
                b(f'v_add_f32 v{a + 1}, v{a + 1}, v{a + 3}')

        def stats(b, items, n):
            for s_, q_, r_, n_ in items:
                b(f'v_mul_f32 v{s_}, {fl(1.0 / n)}, v{s_}')
            for s_, q_, r_, n_ in items:
                b(f'v_mul_f32 v{q_}, {fl(1.0 / n)}, v{q_}')
            for s_, q_, r_, n_ in items:
                b(f'v_fma_f32 v{q_}, -v{s_}, v{s_}, v{q_}')
            for s_, q_, r_, n_ in items:
                b(f'v_max_f32 v{q_}, 0, v{q_}')
            for s_, q_, r_, n_ in items:
                b(f'v_add_f32 v{q_}, {fl(1e-5)}, v{q_}')
            for s_, q_, r_, n_ in items:
                b(f'v_rsq_f32 v{r_}, v{q_}')
            b('s_nop 0')
            for s_, q_, r_, n_ in items:
                b(f'v_mul_f32_e64 v{n_}, -v{s_}, v{r_}')
        stats(b, [(o1(0, sb), o1(0, sb) + 1, rc + sb, nc + sb) for sb in range(2)], 512)
        b('s_waitcnt lgkmcnt(0)')
        b('s_barrier')
        for sb in range(2):
            for r in range(4):
                b(f'ds_bpermute_b32 v{rr + sb * 4 + r}, v{vB}, v{rc + sb} offset:{4 * r}')
                b(f'ds_bpermute_b32 v{nr + sb * 4 + r}, v{vB}, v{nc + sb} offset:{4 * r}')
        for nb in range(4):
            b(f'ds_read_b32 v{cs2 + nb}, v{vCs} offset:{nb * 1024}', lr=('CS', 0))
            b(f'ds_read_b128 {vr(cs1 + 4 * nb, 4)}, v{vCs} offset:{4096 + nb * 1024}', lr=('CS', 0))
        b(self.stamp(T))
        mf, frs = [], []
        for kp in range(8):
            for nb in range(4):
                f0 = len(frs)
                for kk in range(2):
                    frs.append((len(mf) + kk, len(mf) + 2 + kk, I(f'ds_read_b128 {vr(FF + 4 * ((f0 + kk) % NF), 4)}, v{vL16} offset:{((2 * kp + kk) * 4 + nb) * 1024}', lr=('WI', 0))))
                for sb in range(2):
                    for kk in range(2):
                        d = vr(z2(nb, sb), 4)
                        mf.append(f'v_mfma_f32_16x16x32_bf16 {d}, {ar(hf(sb, 2 * kp + kk), 4)}, {vr(FF + 4 * ((f0 + kk) % NF), 4)}, {"0" if kp + kk == 0 else d}')
        for nb in range(4):
            for kq in range(4):
                f0 = len(frs)
                for kk in range(4):
                    frs.append((len(mf) + kk, len(mf) + 4 + kk, I(f'ds_read_b128 {vr(FF + 4 * ((f0 + kk) % NF), 4)}, v{vZ1} offset:{((4 * kq + kk) * 4 + nb) * 1024}', lr=('WI', 1))))
                for sb in range(2):
                    for kk in range(4):
                        d = vr(z1(nb, sb), 4)
                        mf.append(f'v_mfma_f32_16x16x32_bf16 {d}, {vr(FF + 4 * ((f0 + kk) % NF), 4)}, {ar(hf(sb, 4 * kq + kk), 4)}, {"0" if kq + kk == 0 else d}')
        W = Weave(mf)
        LK = 8
        for n in range(LK):
            b(frs[n][2])
        for n in range(LK, len(frs)):
            g = max(2 * (n - LK), frs[n - NF][1] if n >= NF else 0)
            assert g < frs[n][0] - 4
            W.put(g, frs[n][2])
        off = [f'v_mul_f32 v{o2(nb, sb) + r}, v{nr + sb * 4 + r}, v{cs2 + nb}' for nb in range(4) for sb in range(2) for r in range(4)]
        off += [f'v_mul_f32 v{o1(nb, sb) + r}, v{nc + sb}, v{cs1 + 4 * nb + r}' for nb in range(4) for sb in range(2) for r in range(4)]
        W.stream(off, 8, 120)

        def gelu(a, o, rfun):
            L = []
            L += [f'v_fma_f32 v{a + r}, v{a + r}, v{rfun(r)}, v{o + r}' for r in range(4)]
            L += [f'v_mul_f32 v{o + r}, v{a + r}, v{a + r}' for r in range(4)]
            L += [f'v_fma_f32 v{o + r}, v{o + r}, v{vKc}, s{sK0}' for r in range(4)]
            L += [f'v_mul_f32 v{o + r}, v{o + r}, v{a + r}' for r in range(4)]
            L += [f'v_exp_f32 v{o + r}, v{o + r}' for r in range(4)]
            L += [f'v_add_f32 v{o + r}, 1.0, v{o + r}' for r in range(4)]
            L += [f'v_rcp_f32 v{o + r}, v{o + r}' for r in range(4)]
            L += [f'v_mul_f32 v{a + r}, v{a + r}, v{o + r}' for r in range(4)]
            return L
        e2 = []
        for nb in range(4):
            for sb in range(2):
                e2 += gelu(z2(nb, sb), o2(nb, sb), lambda r: rr + sb * 4 + r)
        b(f's_add_u32 s{self.sSp}, s{self.sSp}, {8 * 4096}')
        g = 130
        for k in range(8, 16):
            for it in self.wsp(k):
                if it.kind == 'salu':
                    W.scalar(g, it)
                else:
                    W.put(g + 1 - (g & 1), it)
                    g += 3
        W.stream(e2, 134, 255, cap=OPT.get('g5cap', 4))
        W.emit(b)
        print('g5 mfma section estimated cycles', W.cycles(), file=sys.stderr)
        b(self.stamp(T))
        S, Q = 112, 120
        for sb in range(2):
            for k in (0, 2):
                s_, q_ = S + sb * 4 + k, Q + sb * 4 + k
                b(f'v_pk_add_f32 {vr(s_, 2)}, {vr(z2(0, sb) + k, 2)}, {vr(z2(1, sb) + k, 2)}')
                b(f'v_pk_mul_f32 {vr(q_, 2)}, {vr(z2(0, sb) + k, 2)}, {vr(z2(0, sb) + k, 2)}')
                for nb in range(1, 4):
                    if nb > 1:
                        b(f'v_pk_add_f32 {vr(s_, 2)}, {vr(s_, 2)}, {vr(z2(nb, sb) + k, 2)}')
                    b(f'v_pk_fma_f32 {vr(q_, 2)}, {vr(z2(nb, sb) + k, 2)}, {vr(z2(nb, sb) + k, 2)}, {vr(q_, 2)}')
        for sh in (8, 4, 2, 1):
            for k in range(16):
                b(f'v_add_f32_dpp v{S + k}, v{S + k}, v{S + k} row_ror:{sh} row_mask:0xf bank_mask:0xf')
        for lv in range(3):
            for base in (S, Q):
                for k in range(4 >> lv):
                    b(f'v_cndmask_b32 v{base + k}, v{base + 2 * k}, v{base + 2 * k + 1}, s[{sM0 + 2 * lv}:{sM0 + 2 * lv + 1}]')
        b(f'v_mov_b32 v{S + 1}, v{Q}')
        b(f'v_lshrrev_b32 v{T}, 8, v{vL16}')
        b(f'v_lshlrev_b32 v{T + 2}, 6, v{T}')
        b(f'v_and_b32 v{T + 1}, 0xf0, v{vL16}')
        b(f'v_cmp_gt_u32 vcc, 0x80, v{T + 1}')
        b(f'v_lshrrev_b32 v{T}, 1, v{T + 1}')
        b(f'v_add_u32 v{T}, v{T}, v{T + 2}')
        b(f'v_mov_b32 v{T + 3}, {OOB}')
        b(f'v_cndmask_b32 v{T}, v{T + 3}, v{T}, vcc')
        b(f's_lshl_b32 s{sT0}, s{sCt}, 8')
        b(f's_add_u32 s{sT0}, s{sT0}, s{sZs}')
        b(self.st(vr(S, 2), T, f's{sT0}', n=2, tag='zs'))
        b(f'v_cmp_gt_u32 vcc, 0xe0, v{T + 1}')
        b(f'v_lshl_add_u32 v{T + 1}, v{T + 1}, 4, v{T + 2}')
        b(f'v_mov_b32 v{vPa}, s{sZf}')
        b(f'v_cndmask_b32 v{T + 1}, v{T + 3}, v{T + 1}, vcc')
        b(f'v_cmp_eq_u32 vcc, 0, v{vL16}')
        e1 = [[] for _ in range(4)]
        for nb in range(4):
            for sb in range(2):
                e1[nb] += gelu(z1(nb, sb), o1(nb, sb), lambda r: rc + sb)
            e1[nb] += self.pack8(z1(nb, 0), z1(nb, 0), z1(nb, 1))
        z1st = lambda nb: self.st(vr(z1(nb, 0), 4), vL16, f's{sZ1}', nb * 1024, tag='z')
        b(e1[0][:2])
        b(f'v_cndmask_b32 v{T + 2}, v{T + 3}, v{vL16}, vcc')
        b(e1[0][2:])
        b(vmwait(lambda t: t == 'zs'))
        b(f'buffer_atomic_add v{vOne}, v{T + 2}, s[{sWS}:{sWS + 3}], s{sZf} offen sc1')
        b(z1st(0))
        b(f's_sub_u32 s{self.sSp}, s{self.sSp}, {16 * 4096}')
        for k in range(0, 4):
            b(self.wsp(k))
        b(e1[1]); b(z1st(1))
        b(e1[2]); b(z1st(2))
        b(self.poll_load(vP, vPa, tag='poll'))
        b(e1[3])
        b(vmwait(lambda t: t == 'poll'))
        b(self.poll_check(vP, vPa, 14))
        b(self.stamp(T + 4))
        for k in range(4):
            b(self.ld(vr(S + 4 * k, 4), T + 1, f's{sZs}', 16 * k))
        b(z1st(3))
        for k in range(4, 8):
            b(self.wsp(k))
        for sh in (8, 4, 2, 1):
            for k in range(16):
                b(f'v_add_f32_dpp v{S + k}, v{S + k}, v{S + k} row_ror:{sh} row_mask:0xf bank_mask:0xf')
        stats(b, [(S + 2 * k, S + 2 * k + 1, rr + k, nr + k) for k in range(8)], 896)
        for nb in range(4):
            for sb in range(2):
                for k in (0, 2):
                    a = z2(nb, sb) + k
                    b(f'v_pk_fma_f32 {vr(a, 2)}, {vr(a, 2)}, {vr(rr + sb * 4 + k, 2)}, {vr(nr + sb * 4 + k, 2)}')
            b(self.pack8(z2(nb, 0), z2(nb, 0), z2(nb, 1)))
            b(self.st(vr(z2(nb, 0), 4), vL16, f's{sZ2 + nb}', tag='z'))
        b(f's_lshl_b32 s{sT3}, s{sRt}, 7')
        b(f's_add_u32 s{sT3}, s{sT3}, {FLG + F_Z2 * 128}')
        self.publish(b, ('z',), f's{sT3}')
        self.finish(b)
        c = Block('idle5')
        c('Lidle5:')
        for k in range(16):
            c(self.wsp(k))
            if k == 7:
                c('s_waitcnt vmcnt(16)')
        c('s_branch Lg6')
        self.B['idle5'] = c
        self.cold.ins += c.ins

    def g6(self):
        b = self.blk('g6')
        vP, vPa, vR = self.vP, self.vPa, self.vR
        sZ, sRb6, sCb6 = self.sZ, self.sRb6, self.sCb6
        sUo, sWu = 43, 44
        acc = lambda fb, t: (fb * 4 + t) * 4
        zf = lambda k, fb: 112 + (k % 4) * 28 + fb * 4
        vL2, vBs, vL8 = 235, 236, 237
        b('Lg6:')
        b(self.stamp(0))
        b(f's_lshl_b32 s{sT0}, s{sW}, 9')
        b(f's_add_u32 s{sT0}, s{sT0}, {FLG + F_Z2 * 128}')
        b(f'v_and_b32 v{vPa}, 0x30, v{vL16}')
        b(f'v_lshlrev_b32 v{vPa}, 3, v{vPa}')
        b(f'v_add_u32 v{vPa}, s{sT0}, v{vPa}')
        b(f's_lshr_b32 s{sT1}, s{sRb6}, 1')
        b(f's_lshl_b32 s{sT1}, s{sT1}, 7')
        b(f's_add_u32 s{sT1}, s{sT1}, {FLG + F_Z2 * 128}')
        b(f'v_writelane_b32 v{vPa}, s{sT1}, 4')
        self.srd(b, sC, P_BSP, 4096)
        b(self.poll_load(vP, vPa, tag='poll'))
        b(f'v_bfe_u32 v{vBs}, v{vL16}, 4, 4')
        b(f'v_lshlrev_b32 v{vBs}, 1, v{vBs}')
        b(f's_lshl_b32 s{sT0}, s{sRb6}, 7')
        b(f's_lshl_b32 s{sT1}, s{sW}, 5')
        b(f's_add_u32 s{sT0}, s{sT0}, s{sT1}')
        b(f'buffer_load_ushort v{vBs}, v{vBs}, s[{sC}:{sC + 3}], s{sT0} offen')
        b(f'v_add_u32 v{vL2}, 4096, v{vL16}')
        b(f'v_lshrrev_b32 v{vL8}, 1, v{vL16}')
        self.red_addr(b, 0, 7168)
        b(f's_lshl_b32 s{sZ}, s{sCb6}, 2')
        b(f's_add_u32 s{sZ}, s{sZ}, s{sW}')
        b(f's_mul_i32 s{sZ}, s{sZ}, {16 * 7168}')
        b(f's_add_u32 s{sZ}, s{sZ}, {Z2}')
        b(f's_lshl_b32 s{sT0}, s{sRb6}, 1')
        b(f's_lshr_b32 s{sT1}, s{sW}, 1')
        b(f's_add_u32 s{sT0}, s{sT0}, s{sT1}')
        b(f's_mul_i32 s{sT0}, s{sT0}, 56')
        b(f's_mul_i32 s{sT1}, s{sCb6}, 7')
        b(f's_add_u32 s{sT0}, s{sT0}, s{sT1}')
        b(f's_lshl_b32 s{sT0}, s{sT0}, 10')
        b(f's_and_b32 s{sT1}, s{sW}, 1')
        b(f's_lshl_b32 s{sT1}, s{sT1}, 3')
        b(f's_add_u32 s{sT0}, s{sT0}, s{sT1}')
        b(f's_add_u32 s{sT3}, s{sT0}, {Z1}')
        b(f's_lshl_b32 s{sT0}, s{sRb6}, 2')
        b(f's_lshr_b32 s{sT1}, s{sCb6}, 1')
        b(f's_add_u32 s{sT2}, s{sT0}, s{sT1}')
        b(f's_mul_i32 s{sUo}, s{sT2}, {7 * 4096}')
        b(f's_lshl_b32 s{sT1}, s{sW}, 10')
        b(f's_add_u32 s{sUo}, s{sUo}, s{sT1}')
        b(f's_add_u32 s{sUo}, s{sUo}, {UU}')
        b(f's_lshl_b32 s{sT2}, s{sT2}, 7')
        b(f's_add_u32 s{sT2}, s{sT2}, {FLG + F_U * 128}')
        b(f's_lshl_b32 s{sT0}, s{sJ}, 2')
        b(f's_add_u32 s{sT0}, s{sT0}, s{sW}')
        b(f's_mul_i32 s{sWu}, s{sT0}, {7 * 4096}')
        b(f's_add_u32 s{sWu}, s{sWu}, {WOUT}')
        b('s_waitcnt vmcnt(0)')
        b(self.poll_check(vP, vPa, 14))
        b(self.stamp(0))

        def zl(k):
            return [self.ld(vr(zf(k, fb), 4), vL16 if fb < 4 else vL2, f's{sZ}', (fb & 3) * 1024) for fb in range(7)] + [I(f's_add_u32 s{sZ}, s{sZ}, 7168')]
        for k in range(3):
            b(zl(k))
        mf = []
        for k in range(16):
            it = [(fb, t) for fb in range(7) for t in range(4)] if k < 15 else [(fb, t) for t in (1, 2, 3, 0) for fb in range(7)]
            for fb, t in it:
                d = vr(acc(fb, t), 4)
                mf.append(f'v_mfma_f32_16x16x32_bf16 {d}, {vr(zf(k, fb), 4)}, {ar(k * 16 + 4 * t, 4)}, {"0" if k == 0 else d}')
        W = Weave(mf)
        z1r = 112
        wo = lambda n: [self.ld(ar(n * 16 + 4 * mb, 4), vL16, f's{sWu}', mb * 1024) for mb in range(4)] + [I(f's_add_u32 s{sWu}, s{sWu}, 4096')]
        for k in range(16):
            if k < 13:
                L = zl(k + 3)
            elif k == 13:
                L = [self.ld(vr(z1r + 2 * fb, 2), vL16 if fb < 4 else vL2, f's{sT3}', (fb & 3) * 1024, n=2) for fb in range(7)]
            else:
                L = wo(2 * (k - 14)) + wo(2 * (k - 14) + 1)
            g = 28 * k
            for it in L:
                if it.kind == 'salu':
                    W.scalar(g, it)
                else:
                    W.put(g, it)
                    g += 3
        W.emit(b)
        b(self.stamp(240))
        self.reduce(b, acc, 7, 'R6', 140)
        b(f'v_lshlrev_b32 v{vBs}, 16, v{vBs}')
        b(f's_and_b32 s{sT0}, s{sCb6}, 1')
        b(f's_mul_i32 s{sT1}, s{sT0}, {3 * 4096}')
        b(f's_add_u32 s{sT1}, s{sT1}, s{sUo}')
        b(f's_lshl_b32 s{sT0}, s{sT0}, 9')
        b(f's_add_u32 s{sT0}, s{sT0}, s{sUo}')
        b(f's_add_u32 s{sT0}, s{sT0}, {6 * 4096}')
        for fb in range(7):
            a, t = acc(fb, 0), 140 + 4 * fb
            for k in range(4):
                b(f'v_add_f32 v{a + k}, v{a + k}, v{vBs}')
            for k in range(2):
                b(f'v_lshlrev_b32 v{t + 2 * k}, 16, v{z1r + 2 * fb + k}')
                b(f'v_and_b32 v{t + 2 * k + 1}, 0xffff0000, v{z1r + 2 * fb + k}')
            for k in (0, 2):
                b(f'v_pk_mul_f32 {vr(a + k, 2)}, {vr(a + k, 2)}, {vr(t + k, 2)}')
            if fb & 1:
                b(self.pack8(acc(fb - 1, 0), acc(fb - 1, 0), a))
                b(self.st(vr(acc(fb - 1, 0), 4), vL16, f's{sT1}', tag='u'))
                b(f's_add_u32 s{sT1}, s{sT1}, 4096')
            elif fb == 6:
                b(self.pack8(a, a, a)[:2])
                b(self.st(vr(a, 2), vL8, f's{sT0}', n=2, tag='u'))
        self.publish(b, ('u',), f's{sT2}')
        b(self.stamp(0))
        for n in range(4, 7):
            b(wo(n))
        b(f's_lshl_b32 s{sT0}, s{sH}, 2')
        b(f's_add_u32 s{sT0}, s{sT0}, s{sW}')
        b(f's_mul_i32 s{sUo}, s{sT0}, {7 * 4096}')
        b(f's_add_u32 s{sUo}, s{sUo}, {UU}')
        b(f's_lshl_b32 s{sT0}, s{sT0}, 7')
        b(f's_add_u32 s{sT0}, s{sT0}, {FLG + F_U * 128}')
        b(f'v_mov_b32 v{vPa}, s{sT0}')
        b(self.poll_load(vP, vPa, tag='poll'))
        vX8 = 238
        for t in range(4):
            b(f'v_sub_u32 v{vX8 + t}, v{self.vX + t}, v{vL8}')
        self.red_addr(b, 112 * 1024, 4096)
        self.srd(b, sC, P_OUT, 2 << 20)
        b(vmwait(lambda t: t == 'poll'))
        b(self.poll_check(vP, vPa, 2))
        b(self.stamp(0))
        acc = lambda mb, t: (mb * 4 + t) * 4
        uf = lambda n, t: 64 + n * 16 + 4 * t
        for n in range(7):
            for t in range(4):
                if n < 6:
                    b(self.ld(vr(uf(n, t), 4), self.vX + t, f's{sUo}'))
                else:
                    b(self.ld(vr(uf(n, t), 2), vX8 + t, f's{sUo}', n=2))
                    b(self.ld(vr(uf(n, t) + 2, 2), vX8 + t, f's{sUo}', 512, n=2))
            b(f's_add_u32 s{sUo}, s{sUo}, 4096')
        for grp in ((0,), (1, 2), (3, 4), (5, 6)):
            for t in ((0, 1, 2, 3) if grp[0] < 5 else (1, 2, 3, 0)):
                for mb in range(4):
                    for n in grp:
                        d = vr(acc(mb, t), 4)
                        b(f'v_mfma_f32_16x16x32_bf16 {d}, {ar(n * 16 + 4 * mb, 4)}, {vr(uf(n, t), 4)}, {"0" if n == 0 else d}')
        self.reduce(b, acc, 4, 'R7', 64)
        for c in range(2):
            self.add_bf16(b, acc(2 * c, 0), acc(2 * c + 1, 0), self.vH + 4 * c, 64 + 8 * c)
        for c in range(2):
            b(self.pack8(acc(2 * c, 0), acc(2 * c, 0), acc(2 * c + 1, 0)))
            b(self.st(vr(acc(2 * c, 0), 4), self.vXa, '0', 64 * c, srd=sC, sc=''))
        if self.prof:
            b('s_waitcnt vmcnt(0)')
            b(self.stamp(64))
        self.finish(b)

    def finish_pro(self):
        b = self.B['pro']
        ins = [x for x in b.ins]
        if OPT.get('nost'):
            ins = [x for x in ins if x.tag != 'kvst']
        if OPT.get('nodma'):
            ins = [x for x in ins if not (x.kind == 'vmem' and x.is_dma and x.tag[0] in OPT['nodma'] and x.tag[1] > 2)]
        if OPT.get('nods'):
            ins = [x for x in ins if not (x.kind == 'ds' and 'tr_b16' in x.op)]
        ins, q = resolve_vm_untracked(ins)
        ins, _ = auto_vm(ins)
        ins, _ = auto_lgkm(ins)
        b.ins = ins

    def check(self):
        B = self.B
        xph = {2: [4, 5], 0: [6, 7], 1: [8, 9]}
        rings = {'W': lambda i: ('L', i % 4), 'X': lambda i: [('L', k) for k in xph[i % 3]],
                 'K': lambda i: ('L', ((i + 2) % 4) * 2), 'V': lambda i: ('L', ((i + 2) % 4) * 2 + 1),
                 'SD': lambda i: [('L', 8), ('L', 9)]}
        rings.update(self.tail_rings)
        errs = []
        for j in (0, 1, 3, 6, 7):
            tr = [(B['pro'], 0), (B['attpro0'], 0), (B['attpro'], 0)]
            t = 0
            hk = [None] * (j & 3) + ['side0', 'side1', 'side2', 'side3'] + [None] * 20
            hk = [[(B[x], 0)] if x else [] for x in hk]
            for _ in range(j):
                tr += [(B['b44e'], t), (B['b44o'], t + 1)] + hk.pop(0)
                t += 2
            tr += [(B['b43'], t), (B['b32'], t + 1), (B['epi1'], 0)] + hk.pop(0)
            t += 2
            for _ in range(14 - 2 * j):
                tr += [(B['b22e'], t), (B['b22o'], t + 1)] + hk.pop(0)
                t += 2
            tr += [(B['b21'], t), (B['b10'], t + 1), (B['epi3'], 0)]
            if j == 3:
                tr.append((B['slow'], 0))
            for n in (('g4', 'g5', 'g6') if j != 7 else ('g4', 'idle5', 'g6')):
                tr.append((B[n], 0))
            errs += check_trace(expand_regions(tr), rings, private=('X', 'SD'), name=f'j{j}')
        seen = set()
        for e in errs:
            k = e.split(']')[1]
            if k not in seen:
                seen.add(k)
                print('CHECK', e, file=sys.stderr)
        return len(seen)

    def text(self):
        head = open('cdna_kernels/' + NAME + '.s.ref').read().split('; Override launch')[0]
        out = [head.rstrip(), '; @launch grid=(256,1,1) block=(256,1,1) lds=163840',
               '.amdgcn_target "amdgcn-amd-amdhsa--gfx950"', '.text', f'.globl {NAME}_kernel', '.p2align 8',
               f'.type {NAME}_kernel,@function', f'{NAME}_kernel:']
        for b in self.blocks:
            out.append(f'; ---- {b.name}')
            out.append(b.text())
        out.append('Lend:')
        out.append('  s_endpgm')
        out.append('; ---- rare paths')
        out.append(self.cold.text())
        out.append('  s_endpgm')
        out += ['.section .rodata,"a"', '.p2align 6', f'.amdhsa_kernel {NAME}_kernel', '  .amdhsa_next_free_vgpr 512',
                '  .amdhsa_next_free_sgpr 102', '  .amdhsa_accum_offset 256', '  .amdhsa_group_segment_fixed_size 0',
                '  .amdhsa_kernarg_size 112', '  .amdhsa_user_sgpr_count 2', '  .amdhsa_user_sgpr_kernarg_segment_ptr 1',
                '  .amdhsa_system_sgpr_workgroup_id_x 1', '.end_amdhsa_kernel', '']
        return '\n'.join(out)


def resolve_vm_untracked(ins):
    return resolve_vm(ins)


def expand_regions(tr):
    out = []
    for blk, base in tr:
        nb = Block(blk.name)
        cnt = {}
        for it in blk.ins:
            if it.lw is not None and it.lw[0] in ('T', 'K2', 'ST'):
                k = cnt.get(it.lw, 0)
                cnt[it.lw] = k + 1
                name, i = it.lw
                if name == 'T':
                    reg = ('K', i) if k % 2 == 0 else ('V', i)
                elif name == 'K2':
                    reg = ('K', 2)
                else:
                    reg = ('V', i + 3) if k % 2 == 0 else ('K', i + 4)
                it = I(it.text, lw=reg, tag=it.tag)
            nb(it)
        out.append((nb, base))
    return out


def build(prof=False, stop=None):
    g = Gen(prof, stop)
    g.prologue()
    g.phaseAQ()
    g.finish_pro()
    g.attention()
    g.g4()
    g.g5()
    g.g6()
    L = lambda *a: [('L', k) for k in a]
    g.tail_rings = {'WI': lambda i: L(0, 1, 2, 3) if i == 0 else L(4, 5, 6, 7), 'R4': lambda i: L(7, 8, 9), 'CS': lambda i: L(8),
                    'R6': lambda i: L(0, 1, 2, 3, 4, 5), 'R7': lambda i: L(7, 8, 9)}
    n = g.check()
    return g.text(), n


if __name__ == '__main__':
    prof = '--prof' in sys.argv
    for a in sys.argv[1:]:
        if a.startswith('--') and '=' in a:
            k, v = a[2:].split('=', 1)
            OPT[k] = eval(v)
    out = [a for a in sys.argv[1:] if not a.startswith('--')]
    txt, n = build(prof)
    open(out[0] if out else 'k.s', 'w').write(txt)
    print('check findings:', n, 'bytes', len(txt), file=sys.stderr)
```
